```python
import torch

def _softmax(x, axis=-1):
    return torch.softmax(x, dim=axis)
def _gelu(x):
    return torch.nn.functional.gelu(x, approximate="tanh")
def _silu(x):
    return torch.nn.functional.silu(x)
def _sigmoid(x):
    return torch.sigmoid(x)
def _layernorm(x, axis=-1, eps=1e-5):
    m = x.mean(dim=axis, keepdim=True)
    v = x.var(dim=axis, keepdim=True, unbiased=False)
    return (x - m) / torch.sqrt(v + eps)
def _scatter_add(tgt, idx, src, axis=0):
    return tgt.clone().index_add_(axis, idx, src)
def _segment_sum(src, seg, n):
    out = torch.zeros((n,) + src.shape[1:], dtype=src.dtype)
    return out.index_add_(0, seg, src)
def _pad(x, pw):
    flat = tuple(v for pair in reversed(pw) for v in pair)
    return torch.nn.functional.pad(x, flat)

kernel_name = 'standalone__gqa_block_cached__near_ridge'

def setup_inputs():

    _w = (lambda a: (lambda t: t.to(torch.bfloat16) if t.is_floating_point() else t)(torch.as_tensor(a)))
    B, Sq, D = 16, 240, 512
    Hq, Hkv, Sk, Dh = 32, 32, 512, 128
    assert Hq % Hkv == 0, (Hq, Hkv)
    return {
        "x": _w((lambda *s: torch.randn(*s, dtype=torch.bfloat16) * 0.8)(B, Sq, D)),
        "k_cache": _w((lambda *s: torch.randn(*s, dtype=torch.bfloat16) * 0.8)(B, Hkv, Sk, Dh)),
        "v_cache": _w((lambda *s: torch.randn(*s, dtype=torch.bfloat16) * 0.05)(B, Hkv, Sk, Dh)),
        "wq": _w((lambda *s: torch.randn(*s, dtype=torch.bfloat16) * 0.8)(D, Hq * Dh) * (D ** -0.5)),
        "wo": _w((lambda *s: torch.randn(*s, dtype=torch.bfloat16) * 0.05)(Hq * Dh, D) * ((Hq * Dh) ** -0.5)),
    }

def reference(x, k_cache, v_cache, wq, wo):
    B, Sq, D = x.shape
    Hq, Dh = 32, 128
    Hkv = k_cache.shape[1]
    rep = Hq // Hkv
    q = (lambda x, *d: x.permute(*d))((x @ wq).reshape(B, Sq, Hq, Dh), 0, 2, 1, 3)
    k = (lambda x, n, axis: torch.repeat_interleave(x, n, dim=axis))(k_cache, rep, axis=1)
    v = (lambda x, n, axis: torch.repeat_interleave(x, n, dim=axis))(v_cache, rep, axis=1)
    scores = torch.einsum("bhqd,bhkd->bhqk", q, k) * (Dh ** -0.5)
    p = _softmax(scores, axis=-1)
    o = torch.einsum("bhqk,bhkd->bhqd", p, v)
    return (lambda x, *d: x.permute(*d))(o, 0, 2, 1, 3).reshape(B, Sq, Hq * Dh) @ wo
```

```python
import sys, struct

NSLOT = 10
SLOT = 16384
LDS_BYTES = NSLOT * SLOT
OF_BYTES = 240 * 128 * 1024
WF_OFF = OF_BYTES
WF_BYTES = 32 * 128 * 1024
WS_USED = OF_BYTES + WF_BYTES
SCALE = 1.4426950408889634 * (128 ** -0.5)


def f32bits(x):
    return struct.unpack("<I", struct.pack("<f", x))[0]


class Prog:
    def __init__(self):
        self.L = []
        self.lds = []
        self.lds_done = 0
        self.vm = []
        self.vm_done = 0

    def e(self, s):
        self.L.append(s)

    def lds_op(self, s, tag=None):
        self.L.append(s)
        self.lds.append(tag)

    def vm_op(self, s, tag=None):
        self.L.append(s)
        self.vm.append(tag)

    def _need(self, q, done, tags):
        idx = -1
        for t in tags:
            for i in range(len(q) - 1, -1, -1):
                if q[i] == t:
                    idx = max(idx, i)
                    break
            else:
                raise RuntimeError(f"tag {t} never issued")
        return idx + 1

    def wait_lds(self, tags):
        need = self._need(self.lds, self.lds_done, tags)
        if need <= self.lds_done:
            return False
        n = min(len(self.lds) - need, 15)
        self.L.append(f"s_waitcnt lgkmcnt({n})")
        self.lds_done = len(self.lds) - n
        return True

    def wait_vm(self, tags):
        need = self._need(self.vm, self.vm_done, tags)
        if need <= self.vm_done:
            return False
        n = len(self.vm) - need
        assert n <= 63, n
        self.L.append(f"s_waitcnt vmcnt({n})")
        self.vm_done = need
        return True

    def wait_lds_all(self):
        self.L.append("s_waitcnt lgkmcnt(0)")
        self.lds_done = len(self.lds)

    def wait_vm_all(self):
        self.L.append("s_waitcnt vmcnt(0)")
        self.vm_done = len(self.vm)


V_O = 0
V_S = 128
V_P = 160
V_C = 176
V_KA = 192
V_VA = 196
V_DK = 204
V_DV = 208
V_L = 210
V_LN16 = 214
V_WA = 215
V_XA = 219
V_DW = 223
V_DX = 224
V_T = 226
A_QA = 0
A_QB = 64
A_ACC1 = 128
A_KF = 128
A_VF = 160

S_X, S_W, S_K, S_V, S_WS, S_WO = 4, 8, 12, 16, 20, 24
S_WAVE, S_W4K, S_PROD = 28, 29, 30
S_WOFF, S_XOFF, S_KOFF, S_VOFF = 31, 32, 33, 34
S_CONS = 35
S_T0, S_T1, S_T2, S_T3 = 36, 37, 38, 39
S_LOOP, S_HEAD = 40, 41
S_SCALE = 42
S_OOFF = 44
S_KB, S_VB, S_WB, S_XB0, S_XB1 = 48, 49, 50, 51, 52
S_BIG = 53
S_B, S_HP = 54, 55


def vr(b, n=4):
    return f"v[{b}:{b+n-1}]"


def ar(b, n=4):
    return f"a[{b}:{b+n-1}]"


def mfma(d, a, b, c):
    return f"v_mfma_f32_16x16x32_bf16 {d}, {a}, {b}, {c}"


class K1:
    def __init__(self, opts):
        self.p = Prog()
        self.o = opts
        self.fill_idx = 0

    @staticmethod
    def slot_desc(n):
        if n < 32:
            ch, r = divmod(n, 4)
            return [("W", 2 * ch), ("X", (ch, 0)), ("X", (ch, 1)), ("W", 2 * ch + 1)][r]
        n -= 32
        return ("K", n // 2) if n % 2 == 0 else ("V", n // 2)

    def adv(self, s):
        return [f"s_add_u32 s{s}, s{s}, {SLOT}",
                f"s_cmp_eq_u32 s{s}, {LDS_BYTES}",
                f"s_cselect_b32 s{s}, 0, s{s}"]

    def fill_instrs(self):
        n = self.fill_idx
        self.fill_idx += 1
        typ, par = self.slot_desc(n)
        out = [(f"s_add_u32 m0, s{S_PROD}, s{S_W4K}", "s")]
        nt = " nt" if self.o.get("nt", True) else ""
        if typ == "W":
            for p in range(4):
                out.append((f"s_add_u32 s{S_T0}, s{S_WOFF}, {p * 31744}", "s"))
                out.append((f"buffer_load_dwordx4 v{V_DW}, s[{S_W}:{S_W+3}], s{S_T0} offen offset:{p*1024} lds", ("vm", n)))
            out.append((f"s_add_u32 s{S_WOFF}, s{S_WOFF}, {32 * 8192}", "s"))
        elif typ == "X":
            ch, half = par
            for p in range(4):
                out.append((f"s_add_u32 s{S_T0}, s{S_XOFF}, {half * 32768 + p * 7168}", "s"))
                out.append((f"buffer_load_dwordx4 v{V_DX + (p & 1)}, s[{S_X}:{S_X+3}], s{S_T0} offen offset:{p*1024} lds", ("vm", n)))
            if half == 1:
                out.append((f"s_add_u32 s{S_XOFF}, s{S_XOFF}, 128", "s"))
        elif typ == "K":
            out.append(("s_nop 0", "s"))
            for p in range(4):
                out.append((f"buffer_load_dwordx4 v{V_DK + p}, s[{S_K}:{S_K+3}], s{S_KOFF} offen offset:{p*1024}{nt} lds", ("vm", n)))
            out.append((f"s_add_u32 s{S_KOFF}, s{S_KOFF}, {SLOT}", "s"))
        else:
            out.append(("s_nop 0", "s"))
            for p in range(4):
                out.append((f"buffer_load_dwordx4 v{V_DV + (p & 1)}, s[{S_V}:{S_V+3}], s{S_VOFF} offen offset:{p*1024}{nt} lds", ("vm", n)))
            out.append((f"s_add_u32 s{S_VOFF}, s{S_VOFF}, {SLOT}", "s"))
        for a in self.adv(S_PROD):
            out.append((a, "s"))
        return out

    def emit_item(self, it):
        text, kind = it
        if isinstance(kind, tuple) and kind[0] == "vm":
            self.p.vm_op(text, ("slot", kind[1]))
        elif isinstance(kind, tuple) and kind[0] == "lds":
            self.p.lds_op(text, kind[1])
        else:
            self.p.e(text)

    def open_slot(self, base_sgpr, addr_regs):
        salu = [f"s_sub_u32 s{S_T1}, s{S_CONS}, s{base_sgpr}",
                f"s_mov_b32 s{base_sgpr}, s{S_CONS}"] + self.adv(S_CONS)
        valu = [f"v_add_u32 v{r}, s{S_T1}, v{r}" for r in addr_regs]
        return salu, valu

    def prologue(self):
        p = self.p
        e = p.e
        e("s_cmp_ge_u32 s2, 256")
        e("s_cbranch_scc1 L_k1_done")
        e("s_load_dwordx8 s[56:63], s[0:1], 0")
        e("s_load_dwordx2 s[64:65], s[0:1], 32")
        e("s_load_dwordx2 s[66:67], s[0:1], 56")
        e(f"v_and_b32 v{V_T}, 63, v0")
        e(f"v_lshrrev_b32 v{V_T+1}, 6, v0")
        e("s_nop 0")
        e(f"v_readfirstlane_b32 s{S_WAVE}, v{V_T+1}")
        L, G, I16, R4, C4, Q = V_T, V_T + 1, V_T + 2, V_T + 3, V_T + 4, V_T + 5
        T0, T1, T2 = V_T + 6, V_T + 7, V_T + 8
        e(f"v_lshrrev_b32 v{G}, 4, v{L}")
        e(f"v_and_b32 v{I16}, 15, v{L}")
        e(f"v_lshrrev_b32 v{R4}, 2, v{I16}")
        e(f"v_and_b32 v{C4}, 3, v{I16}")
        e(f"v_lshlrev_b32 v{V_LN16}, 4, v{L}")
        e(f"s_and_b32 s{S_T0}, s2, 7")
        e(f"s_lshl_b32 s{S_T0}, s{S_T0}, 1")
        e(f"s_lshr_b32 s{S_T1}, s2, 3")
        e(f"s_and_b32 s{S_T1}, s{S_T1}, 1")
        e(f"s_add_u32 s{S_B}, s{S_T0}, s{S_T1}")
        e(f"s_lshr_b32 s{S_HP}, s2, 4")
        e(f"s_lshl_b32 s{S_W4K}, s{S_WAVE}, 12")
        for ks in range(4):
            e(f"v_add_u32 v{T0}, {4*ks}, v{G}")
            e(f"v_xor_b32 v{T0}, v{T0}, v{I16}")
            e(f"v_lshlrev_b32 v{T0}, 4, v{T0}")
            e(f"v_lshl_add_u32 v{V_KA+ks}, v{I16}, 8, v{T0}")
        e(f"v_lshl_add_u32 v{T1}, v{G}, 2, v{R4}")
        e(f"v_and_b32 v{T2}, 7, v{T1}")
        for dt in range(8):
            e(f"v_xor_b32 v{T0}, {dt}, v{T2}")
            e(f"v_lshlrev_b32 v{T0}, 5, v{T0}")
            e(f"v_lshl_add_u32 v{T0}, v{T1}, 8, v{T0}")
            e(f"v_lshl_add_u32 v{V_VA+dt}, v{C4}, 3, v{T0}")
        e(f"v_lshl_add_u32 v{T1}, v{G}, 3, v{R4}")
        for D in range(4):
            e(f"v_xor_b32 v{T0}, {D}, v{R4}")
            e(f"v_lshlrev_b32 v{T0}, 6, v{T0}")
            e(f"v_lshl_add_u32 v{T0}, v{T1}, 8, v{T0}")
            e(f"v_lshl_add_u32 v{V_WA+D}, v{C4}, 4, v{T0}")
        e(f"v_lshrrev_b32 v{T1}, 1, v{I16}")
        for half in range(2):
            for ks2 in range(2):
                e(f"v_add_u32 v{T0}, {4*ks2}, v{G}")
                e(f"v_xor_b32 v{T0}, v{T0}, v{T1}")
                e(f"v_lshlrev_b32 v{T0}, 4, v{T0}")
                e(f"v_lshl_add_u32 v{T0}, v{I16}, 7, v{T0}")
                e(f"v_add_u32 v{V_XA+half*2+ks2}, s{S_W4K}, v{T0}")
        for pp in range(4):
            e(f"v_add_u32 v{T0}, {4*pp}, v{G}")
            e(f"v_xor_b32 v{T0}, v{T0}, v{I16}")
            e(f"v_lshlrev_b32 v{T0}, 4, v{T0}")
            e(f"v_lshl_add_u32 v{V_DK+pp}, v{G}, 8, v{T0}")
        for pp in range(2):
            e(f"v_add_u32 v{T0}, {4*pp}, v{G}")
            e(f"v_lshlrev_b32 v{T0}, 1, v{T0}")
            e(f"v_xor_b32 v{T0}, v{T0}, v{I16}")
            e(f"v_lshlrev_b32 v{T0}, 4, v{T0}")
            e(f"v_lshl_add_u32 v{V_DV+pp}, v{G}, 8, v{T0}")
        e(f"v_lshlrev_b32 v{T0}, 2, v{G}")
        e(f"v_xor_b32 v{T0}, v{T0}, v{I16}")
        e(f"v_lshlrev_b32 v{T0}, 4, v{T0}")
        e(f"v_lshl_add_u32 v{V_DW}, v{G}, 13, v{T0}")
        e(f"v_lshrrev_b32 v{T1}, 3, v{L}")
        e(f"v_and_b32 v{T2}, 7, v{L}")
        for pp in range(2):
            e(f"v_add_u32 v{T0}, {4*pp}, v{G}")
            e(f"v_xor_b32 v{T0}, v{T0}, v{T2}")
            e(f"v_lshlrev_b32 v{T0}, 4, v{T0}")
            e(f"v_lshl_add_u32 v{V_DX+pp}, v{T1}, 10, v{T0}")
        e("s_waitcnt lgkmcnt(0)")
        e(f"s_mul_i32 s{S_T0}, s{S_B}, 245760")
        e(f"s_add_u32 s{S_X}, s56, s{S_T0}")
        e(f"s_addc_u32 s{S_X+1}, s57, 0")
        e(f"s_and_b32 s{S_X+1}, s{S_X+1}, 0xffff")
        e(f"s_mov_b32 s{S_X+2}, 245760")
        e(f"s_mov_b32 s{S_X+3}, 0x20000")
        e(f"s_lshl_b32 s{S_T0}, s{S_HP}, 9")
        e(f"s_add_u32 s{S_W}, s62, s{S_T0}")
        e(f"s_addc_u32 s{S_W+1}, s63, 0")
        e(f"s_and_b32 s{S_W+1}, s{S_W+1}, 0xffff")
        e(f"s_sub_u32 s{S_W+2}, 4194304, s{S_T0}")
        e(f"s_mov_b32 s{S_W+3}, 0x20000")
        e(f"s_lshl_b32 s{S_T0}, s{S_B}, 22")
        e(f"s_lshl_b32 s{S_T1}, s{S_HP}, 18")
        e(f"s_add_u32 s{S_T0}, s{S_T0}, s{S_T1}")
        e(f"s_add_u32 s{S_K}, s58, s{S_T0}")
        e(f"s_addc_u32 s{S_K+1}, s59, 0")
        e(f"s_and_b32 s{S_K+1}, s{S_K+1}, 0xffff")
        e(f"s_mov_b32 s{S_K+2}, 262144")
        e(f"s_mov_b32 s{S_K+3}, 0x20000")
        e(f"s_add_u32 s{S_V}, s60, s{S_T0}")
        e(f"s_addc_u32 s{S_V+1}, s61, 0")
        e(f"s_and_b32 s{S_V+1}, s{S_V+1}, 0xffff")
        e(f"s_mov_b32 s{S_V+2}, 262144")
        e(f"s_mov_b32 s{S_V+3}, 0x20000")
        e(f"s_mov_b32 s{S_WS}, s66")
        e(f"s_and_b32 s{S_WS+1}, s67, 0xffff")
        e(f"s_mov_b32 s{S_WS+2}, {WS_USED}")
        e(f"s_mov_b32 s{S_WS+3}, 0x20000")
        e(f"s_mov_b32 s{S_WO}, s64")
        e(f"s_and_b32 s{S_WO+1}, s65, 0xffff")
        e(f"s_mov_b32 s{S_WO+2}, 4194304")
        e(f"s_mov_b32 s{S_WO+3}, 0x20000")
        e(f"s_and_b32 s{S_T0}, s{S_WAVE}, 1")
        e(f"s_lshl_b32 s{S_T0}, s{S_T0}, 17")
        e(f"s_lshr_b32 s{S_T1}, s{S_WAVE}, 1")
        e(f"s_lshl_b32 s{S_T1}, s{S_T1}, 8")
        e(f"s_add_u32 s{S_WOFF}, s{S_T0}, s{S_T1}")
        e(f"s_lshl_b32 s{S_XOFF}, s{S_WAVE}, 16")
        e(f"s_mov_b32 s{S_KOFF}, s{S_W4K}")
        e(f"s_mov_b32 s{S_VOFF}, s{S_W4K}")
        e(f"s_mov_b32 s{S_PROD}, 0")
        e(f"s_mov_b32 s{S_CONS}, 0")
        for s in (S_KB, S_VB, S_WB, S_XB0, S_XB1):
            e(f"s_mov_b32 s{s}, 0")
        e(f"s_mov_b32 s{S_SCALE}, {f32bits(SCALE):#x}")
        e(f"s_mul_i32 s{S_T0}, s{S_B}, 15")
        e(f"s_lshl_b32 s{S_T1}, s{S_WAVE}, 2")
        e(f"s_add_u32 s{S_T0}, s{S_T0}, s{S_T1}")
        e(f"s_lshl_b32 s{S_T0}, s{S_T0}, 17")
        e(f"s_lshl_b32 s{S_T1}, s{S_HP}, 13")
        e(f"s_add_u32 s{S_OOFF}, s{S_T0}, s{S_T1}")
        for qt in range(1, 4):
            e(f"s_add_u32 s{S_OOFF+qt}, s{S_OOFF}, {qt*131072}")
        e(f"s_cmp_eq_u32 s{S_WAVE}, 3")
        e(f"s_cselect_b32 s{S_OOFF+3}, 0x7f000000, s{S_OOFF+3}")
        e(f"v_lshrrev_b32 v{T0}, 5, v{L}")
        e(f"v_and_b32 v{T1}, 31, v{L}")
        e(f"v_lshlrev_b32 v{T1}, 4, v{T1}")
        e(f"v_lshl_add_u32 v{T0}, v{T0}, 10, v{T1}")
        e(f"s_lshr_b32 s{S_T0}, s2, 1")
        e(f"s_lshl_b32 s{S_T0}, s{S_T0}, 15")
        e(f"s_and_b32 s{S_T1}, s2, 1")
        e(f"s_lshl_b32 s{S_T1}, s{S_T1}, 9")
        e(f"s_add_u32 s{S_T0}, s{S_T0}, s{S_T1}")
        e(f"s_lshl_b32 s{S_T1}, s{S_WAVE}, 13")
        e(f"s_add_u32 s{S_T0}, s{S_T0}, s{S_T1}")
        e(f"s_add_u32 m0, s{S_W4K}, {9*SLOT}")
        for pp in range(4):
            e(f"s_add_u32 s{S_T1}, s{S_T0}, {pp*1024}")
            p.vm_op(f"buffer_load_dwordx4 v{T0}, s[{S_WO}:{S_WO+3}], s{S_T1} offen offset:{pp*1024} lds", "wo")
        for n in range(9):
            for it in self.fill_instrs():
                self.emit_item(it)
        e(f"v_lshl_add_u32 v{T1}, v{G}, 2, v{R4}")
        e(f"v_lshlrev_b32 v{T1}, 9, v{T1}")
        e(f"v_lshl_add_u32 v{T1}, v{C4}, 4, v{T1}")
        e(f"s_lshl_b32 s{S_T0}, s{S_WAVE}, 7")
        e(f"s_add_u32 s{S_T0}, s{S_T0}, {9*SLOT}")
        e(f"v_add_u32 v{T1}, s{S_T0}, v{T1}")
        p.wait_vm(["wo"])
        e("s_barrier")
        for j in range(4):
            for r in range(2):
                d = V_S + j * 4 + r * 2
                p.lds_op(f"ds_read_b64_tr_b16 {vr(d,2)}, v{T1} offset:{(j>>1)*64 + (j&1)*8 + r*16*512}", ("wo", j))
        e(f"s_and_b32 s{S_T0}, s2, 1")
        e(f"s_lshl_b32 s{S_T0}, s{S_T0}, 4")
        e(f"s_lshl_b32 s{S_T1}, s{S_WAVE}, 2")
        e(f"s_add_u32 s{S_T0}, s{S_T0}, s{S_T1}")
        e(f"s_lshl_b32 s{S_T0}, s{S_T0}, 17")
        e(f"s_lshr_b32 s{S_T1}, s2, 1")
        e(f"s_lshl_b32 s{S_T1}, s{S_T1}, 10")
        e(f"s_add_u32 s{S_T0}, s{S_T0}, s{S_T1}")
        e(f"s_add_u32 s{S_T0}, s{S_T0}, {WF_OFF}")
        p.wait_lds_all()
        for j in range(4):
            e(f"s_add_u32 s{S_T1}, s{S_T0}, {j*131072}")
            p.vm_op(f"buffer_store_dwordx4 {vr(V_S+j*4)}, v{V_LN16}, s[{S_WS}:{S_WS+3}], s{S_T1} offen", "wost")
        e("s_nop 1")

    def w_read(self, kap, f, r):
        hd, dt = f >> 3, f & 7
        D, T = dt >> 1, dt & 1
        d = V_S + (f & 7) * 4 + r * 2
        return (f"ds_read_b64_tr_b16 {vr(d,2)}, v{V_WA+D} offset:{hd*8192 + r*1024 + T*8}", ("lds", ("w", kap, f)))

    def x_read(self, kap, qt):
        ks2 = kap & 1
        d = V_P + (kap & 1) * 16 + qt * 4
        return (f"ds_read_b128 {vr(d)}, v{V_XA + (qt>>1)*2 + ks2} offset:{(qt&1)*2048}", ("lds", ("x", kap, qt)))

    def qproj_pre(self):
        p = self.p
        p.wait_vm([("slot", 2)])
        p.e("s_barrier")
        for it in self.fill_instrs():
            self.emit_item(it)
        for base, regs in ((S_WB, range(V_WA, V_WA + 4)), (S_XB0, range(V_XA, V_XA + 2)), (S_XB1, range(V_XA + 2, V_XA + 4))):
            salu, valu = self.open_slot(base, regs)
            for s in salu:
                p.e(s)
            for s in valu:
                p.e(s)
        for qt in range(4):
            self.emit_item(self.x_read(0, qt))
        for f in range(7):
            for r in range(2):
                self.emit_item(self.w_read(0, f, r))

    def qproj_step(self, kap):
        p = self.p
        last = kap == 15
        post = [[] for _ in range(64)]
        valu = [[] for _ in range(64)]
        for g in range(64):
            if g % 4 in (0, 1):
                f_cons = g // 4 - 1
                F = kap * 16 + f_cons + 8
                k2, f2 = divmod(F, 16)
                if k2 <= 15 and F >= 7:
                    post[g].append(self.w_read(k2, f2, g % 4))
        if not last:
            salu, v = self.open_slot(S_WB_next(self, kap), range(V_WA, V_WA + 4))
            post[34] += [(s, "s") for s in salu]
            valu[34] += v[:2]
            valu[35] += v[2:]
        if not last:
            if kap & 1:
                for base, regs, g in ((S_XB0, range(V_XA, V_XA + 2), 38), (S_XB1, range(V_XA + 2, V_XA + 4), 39)):
                    salu, v = self.open_slot(base, regs)
                    post[g] += [(s, "s") for s in salu]
                    valu[g] += v
            for qt in range(4):
                post[42 + 4 * qt].append(self.x_read(kap + 1, qt))
        nfree = 0 if kap == 0 else (1 if kap & 1 else 3)
        fills = []
        for _ in range(nfree):
            fills += self.fill_instrs()
        if not last:
            req = (kap + 1) // 2 * 4 + (3 if (kap + 1) & 1 else 2)
        else:
            req = None
        g = 2
        for it in fills:
            post[g].append(it)
            if isinstance(it[1], tuple):
                g += 1
                if g % 4 in (0, 1):
                    g += 2 - g % 4
        assert g <= 34, g
        for g in range(64):
            f, qt = g >> 2, g & 3
            hd, dt = f >> 3, f & 7
            need = [("w", kap, f)]
            if f == 0:
                need.append(("x", kap, qt))
            p.wait_lds(need)
            accb = (dt * 4 + qt) * 4
            acc = vr(V_O + accb) if hd == 0 else ar(A_ACC1 + accb)
            p.e(mfma(acc, vr(V_S + (f & 7) * 4), vr(V_P + (kap & 1) * 16 + qt * 4), "0" if kap == 0 else acc))
            if g == 1:
                if req is not None:
                    p.wait_vm([("slot", req)])
                p.e("s_barrier")
            for it in post[g]:
                self.emit_item(it)
            for s in valu[g]:
                p.e(s)

    def qconvert(self):
        p = self.p
        p.e("s_nop 7")
        p.e("s_nop 7")
        T = V_T
        for hd in range(2):
            dst = A_QA if hd == 0 else A_QB
            for qt in range(4):
                for ks in range(4):
                    for T2 in range(2):
                        accb = ((2 * ks + T2) * 4 + qt) * 4
                        if hd == 0:
                            src = [V_O + accb + i for i in range(4)]
                            for i in range(4):
                                p.e(f"v_mul_f32 v{src[i]}, s{S_SCALE}, v{src[i]}")
                        else:
                            src = [T + T2 * 4 + i for i in range(4)]
                            for i in range(4):
                                p.e(f"v_accvgpr_read_b32 v{src[i]}, a{A_ACC1+accb+i}")
                            for i in range(4):
                                p.e(f"v_mul_f32 v{src[i]}, s{S_SCALE}, v{src[i]}")
                        p.e(f"v_cvt_pk_bf16_f32 v{T+8+T2*2}, v{src[0]}, v{src[1]}")
                        p.e(f"v_cvt_pk_bf16_f32 v{T+8+T2*2+1}, v{src[2]}, v{src[3]}")
                    for i in range(4):
                        p.e(f"v_accvgpr_write_b32 a{dst + (qt*4+ks)*4 + i}, v{T+8+i}")

    def k_read(self, j, kt, ks):
        d = A_KF + (kt * 4 + ks) * 4
        return (f"ds_read_b128 {ar(d)}, v{V_KA+ks} offset:{(j&1)*8192 + kt*4096}", ("lds", ("k", j, kt, ks)))

    def v_read(self, j, dt, r):
        d = A_VF + dt * 4 + r * 2
        return (f"ds_read_b64_tr_b16 {ar(d,2)}, v{V_VA+dt} offset:{(j&1)*8192 + r*4096}", ("lds", ("v", j, dt)))

    def softmax_ops(self, qt):
        regs = [V_S + (kt * 4 + qt) * 4 + i for kt in range(2) for i in range(4)]
        ex = [f"v_exp_f32 v{r}, v{r}" for r in regs]
        ad = [f"v_add_f32 v{V_L+qt}, v{V_L+qt}, v{r}" for r in regs]
        cv = [f"v_cvt_pk_bf16_f32 v{V_P+qt*4+i}, v{regs[2*i]}, v{regs[2*i+1]}" for i in range(4)]
        return ex, ad, cv

    def attn_step(self, head, j):
        p = self.p
        J = 16 * head + j
        hasqk = j < 15
        haspv = j >= 0
        post = [[] for _ in range(64)]
        valu = [[] for _ in range(64)]
        if haspv:
            for k in range(16):
                post[2 * k + 1].append(self.v_read(J, k >> 1, k & 1))
        if j < 14:
            for k in range(8):
                post[37 + 2 * k].append(self.k_read(J + 2, k >> 2, k & 3))
        if j < 14 and (j & 1) == 0:
            salu, v = self.open_slot(S_KB, range(V_KA, V_KA + 4))
            post[32] += [(s, "s") for s in salu[:3]]
            post[34] += [(s, "s") for s in salu[3:]]
            for i, s in enumerate(v):
                valu[33 + (i >> 1) * 2].append(s)
        if j < 15 and ((j + 1) & 1) == 0:
            salu, v = self.open_slot(S_VB, range(V_VA, V_VA + 8))
            post[54] += [(s, "s") for s in salu[:3]]
            post[56] += [(s, "s") for s in salu[3:]]
            for i, s in enumerate(v):
                valu[55 + (i >> 1) * 2].append(s)
        fills = []
        if j >= 1:
            fills = self.fill_instrs()
        sal = [it for it in fills if not isinstance(it[1], tuple)]
        vms = [it for it in fills if isinstance(it[1], tuple)]
        if fills:
            post[2].append(sal[0])
            for i, it in enumerate(vms):
                post[4 + 2 * i].append(it)
            rest = sal[2:]
            post[12].append(rest[0])
            post[14].append(rest[1])
            post[16] += rest[2:]
        def place(qt, g0):
            ex, ad, cv = self.softmax_ops(qt)
            for i in range(8):
                valu[g0 + 2 * i].append(ex[i])
                valu[g0 + 2 * i + 1].insert(0, ad[i])
            return cv
        if haspv:
            cv3 = place(3, 0)
            for i in range(4):
                valu[17 + 2 * i].append(cv3[i])
        if hasqk and j >= 0:
            cv0 = place(0, 16)
            cv1 = place(1, 32)
            cv2 = place(2, 48)
            for i in range(4):
                valu[41 + 2 * i].append(cv0[i])
                valu[53 + 2 * i].append(cv1[i])
            self.pending_cv2 = cv2
        if haspv and j >= 0:
            for i, s in enumerate(self.prev_cv2):
                valu[1 + 2 * i].append(s)
        A0 = 32
        req = None
        if j >= 0 and (j & 1) == 0:
            req = A0 + J + 2 if j < 14 else A0 + J + 1
        gaps = list(range(64))
        if not hasqk:
            pass
        for g in gaps:
            isqk = g < 32
            if isqk and not hasqk:
                mf = None
            elif (not isqk) and not haspv:
                mf = None
            elif isqk:
                qt, kt, ks = g >> 3, (g >> 2) & 1, g & 3
                if qt == 0:
                    p.wait_lds([("k", J + 1, kt, ks)])
                s = vr(V_S + (kt * 4 + qt) * 4)
                c = s if ks else ("0" if j == -1 else vr(V_C + qt * 4))
                mf = mfma(s, ar(A_KF + (kt * 4 + ks) * 4), ar(A_QA + (qt * 4 + ks) * 4), c)
            else:
                qt, dt = (g - 32) >> 3, (g - 32) & 7
                if qt == 0:
                    p.wait_lds([("v", J, dt)])
                o = vr(V_O + (dt * 4 + qt) * 4)
                mf = mfma(o, ar(A_VF + dt * 4), vr(V_P + qt * 4), "0" if j == 0 else o)
            if mf:
                p.e(mf)
            if g == 0 and j >= 0:
                if req is not None:
                    p.wait_vm([("slot", req)])
                p.e("s_barrier")
            for it in post[g]:
                self.emit_item(it)
            vl = valu[g]
            for s in vl:
                p.e(s)
            if not mf and vl:
                p.e("s_nop 0")
            if j == -1 and g == 31:
                self.first_tile()
        if hasqk:
            self.prev_cv2 = self.pending_cv2

    def first_tile(self):
        p = self.p
        p.e("s_nop 7")
        p.e("s_nop 3")
        T = V_T
        for qt in range(4):
            r = [V_S + (kt * 4 + qt) * 4 + i for kt in range(2) for i in range(4)]
            p.e(f"v_max3_f32 v{T+qt}, v{r[0]}, v{r[1]}, v{r[2]}")
            p.e(f"v_max3_f32 v{T+4+qt}, v{r[3]}, v{r[4]}, v{r[5]}")
            p.e(f"v_max3_f32 v{T+qt}, v{T+qt}, v{r[6]}, v{r[7]}")
            p.e(f"v_max_f32 v{T+qt}, v{T+qt}, v{T+4+qt}")
        for qt in range(4):
            p.e(f"v_mov_b32 v{T+4+qt}, v{T+qt}")
        p.e("s_nop 1")
        for qt in range(4):
            p.e(f"v_permlane16_swap_b32 v{T+qt}, v{T+4+qt}")
        p.e("s_nop 1")
        for qt in range(4):
            p.e(f"v_max_f32 v{T+qt}, v{T+qt}, v{T+4+qt}")
        for qt in range(4):
            p.e(f"v_mov_b32 v{T+4+qt}, v{T+qt}")
        p.e("s_nop 1")
        for qt in range(4):
            p.e(f"v_permlane32_swap_b32 v{T+qt}, v{T+4+qt}")
        p.e("s_nop 1")
        for qt in range(4):
            p.e(f"v_max_f32 v{T+qt}, v{T+qt}, v{T+4+qt}")
        p.e(f"v_max_f32 v{T+3}, s{S_BIG}, v{T+3}")
        for qt in range(4):
            for i in range(4):
                p.e(f"v_sub_f32 v{V_C+qt*4+i}, 0, v{T+qt}")
            p.e(f"v_mov_b32 v{V_L+qt}, 0")
        for qt in range(4):
            for kt in range(2):
                for i in range(4):
                    r = V_S + (kt * 4 + qt) * 4 + i
                    p.e(f"v_sub_f32 v{r}, v{r}, v{T+qt}")
        for qt in range(3):
            ex, ad, cv = self.softmax_ops(qt)
            for s in ex:
                p.e(s)
            p.e("s_nop 0")
            for s in ad:
                p.e(s)
            if qt < 2:
                for s in cv:
                    p.e(s)
            else:
                self.pending_cv2 = cv

    def head_pre(self, head):
        p = self.p
        J = 16 * head
        p.wait_vm([("slot", 32 + J)])
        p.e("s_barrier")
        for _ in range(3 if head == 0 else 1):
            for it in self.fill_instrs():
                self.emit_item(it)
        salu, v = self.open_slot(S_KB, range(V_KA, V_KA + 4))
        for s in salu + v:
            p.e(s)
        for k in range(8):
            self.emit_item(self.k_read(J, k >> 2, k & 3))

    def epilogue(self, head):
        p = self.p
        T = V_T
        p.e("s_nop 7")
        for qt in range(4):
            p.e(f"v_mov_b32 v{T+4+qt}, v{V_L+qt}")
        p.e("s_nop 1")
        for qt in range(4):
            p.e(f"v_permlane16_swap_b32 v{V_L+qt}, v{T+4+qt}")
        p.e("s_nop 1")
        for qt in range(4):
            p.e(f"v_add_f32 v{V_L+qt}, v{V_L+qt}, v{T+4+qt}")
        for qt in range(4):
            p.e(f"v_mov_b32 v{T+4+qt}, v{V_L+qt}")
        p.e("s_nop 1")
        for qt in range(4):
            p.e(f"v_permlane32_swap_b32 v{V_L+qt}, v{T+4+qt}")
        p.e("s_nop 1")
        for qt in range(4):
            p.e(f"v_add_f32 v{V_L+qt}, v{V_L+qt}, v{T+4+qt}")
        for qt in range(4):
            p.e(f"v_rcp_f32 v{T+qt}, v{V_L+qt}")
        p.e("s_nop 0")
        k = 0
        for qt in range(4):
            for s in range(4):
                d = T + 8 + (k & 1) * 4
                k += 1
                for T2 in range(2):
                    b = V_O + ((2 * s + T2) * 4 + qt) * 4
                    for i in range(4):
                        p.e(f"v_mul_f32 v{b+i}, v{b+i}, v{T+qt}")
                    p.e(f"v_cvt_pk_bf16_f32 v{d+T2*2}, v{b}, v{b+1}")
                    p.e(f"v_cvt_pk_bf16_f32 v{d+T2*2+1}, v{b+2}, v{b+3}")
                p.vm_op(f"buffer_store_dwordx4 {vr(d)}, v{V_LN16}, s[{S_WS}:{S_WS+3}], s{S_OOFF+qt} offen offset:{s*1024}", "ost")
        for qt in range(4):
            p.e(f"s_add_u32 s{S_OOFF+qt}, s{S_OOFF+qt}, 4096")

    def build(self):
        p = self.p
        marks = []
        self.prologue()
        p.e(f"s_cmp_eq_u32 s{S_WAVE}, 3")
        p.e(f"s_mov_b32 s{S_T0}, 0xff7fffff")
        p.e(f"s_cselect_b32 s{S_BIG}, 0x7149f2ca, s{S_T0}")
        self.qproj_pre()
        for kap in range(16):
            marks.append(("qp", kap, len(p.L)))
            self.qproj_step(kap)
        marks.append(("qp", 16, len(p.L)))
        self.qconvert()
        if self.o.get("dumpq"):
            self.dump_q()
            return marks
        for head in range(2):
            marks.append(("head", head, len(p.L)))
            if head == 1:
                for i in range(64):
                    p.e(f"v_accvgpr_mov_b32 a{A_QA+i}, a{A_QB+i}")
            self.head_pre(head)
            for j in range(-1, 16):
                marks.append(("at", head, j, len(p.L)))
                self.attn_step(head, j)
            marks.append(("at", head, 16, len(p.L)))
            self.epilogue(head)
        marks.append(("head", 2, len(p.L)))
        return marks

    def dump_q(self):
        p = self.p
        for hd in range(2):
            for qt in range(4):
                for ks in range(4):
                    b = (A_QA if hd == 0 else A_QB) + (qt * 4 + ks) * 4
                    for i in range(4):
                        p.e(f"v_accvgpr_read_b32 v{V_T+i}, a{b+i}")
                    p.vm_op(f"buffer_store_dwordx4 {vr(V_T)}, v{V_LN16}, s[{S_WS}:{S_WS+3}], s{S_OOFF+qt} offen offset:{ks*1024}", "ost")
                    p.e("s_nop 2")
            for qt in range(4):
                p.e(f"s_add_u32 s{S_OOFF+qt}, s{S_OOFF+qt}, 4096")


def S_WB_next(self, kap):
    return S_WB


def fold(lines, ranges, label, counter):
    s0, e0 = ranges[0]
    body = lines[s0:e0]
    for (s, e) in ranges[1:]:
        assert lines[s:e] == body, f"loop {label}: iteration differs"
    n = len(ranges)
    out = [f"s_mov_b32 s{counter}, {n}", f"{label}:"] + body + [
        f"s_sub_u32 s{counter}, s{counter}, 1", f"s_cmp_lg_u32 s{counter}, 0", f"s_cbranch_scc1 {label}"]
    return out


def k1_text(opts):
    k = K1(opts)
    marks = k.build()
    L = k.p.L
    if opts.get("nofold"):
        return L
    pos = {m[:-1]: m[-1] for m in marks}
    out = []
    cur = 0

    def take(upto):
        nonlocal cur
        out.extend(L[cur:upto])
        cur = upto

    def pairs(key, a, b):
        return [(pos[key(i)], pos[key(i + 2)]) for i in range(a, b, 2)]

    def longest_run(rs):
        best = (0, 1)
        i = 0
        while i < len(rs):
            j = i + 1
            while j < len(rs) and L[rs[j][0]:rs[j][1]] == L[rs[i][0]:rs[i][1]]:
                j += 1
            if j - i > best[1]:
                best = (i, j - i)
            i = j
        return rs[best[0]:best[0] + best[1]]

    rs = longest_run(pairs(lambda i: ("qp", i), 1, 15))
    take(rs[0][0])
    out.extend(fold(L, rs, "L_qp", S_LOOP))
    cur = rs[-1][1]
    if opts.get("dumpq"):
        take(len(L))
        return out
    for head in range(2):
        rs = longest_run(pairs(lambda i: ("at", head, i), 1, 15))
        take(rs[0][0])
        out.extend(fold(L, rs, f"L_at{head}", S_LOOP))
        cur = rs[-1][1]
    take(len(L))
    return out


def k2_text(opts):
    p = Prog()
    e = p.e
    DEPTH = 4
    NK = 32
    ACC = 0
    lane, g, i16 = 128, 129, 130
    VA = 131
    T = 132
    e("s_cmp_ge_u32 s2, 240")
    e("s_cbranch_scc1 L_k2_done")
    e("s_load_dwordx2 s[4:5], s[0:1], 56")
    e("s_load_dwordx2 s[6:7], s[0:1], 40")
    e(f"v_and_b32 v{lane}, 63, v0")
    e(f"v_lshrrev_b32 v{T}, 6, v0")
    e("s_nop 0")
    e(f"v_readfirstlane_b32 s16, v{T}")
    e(f"v_lshrrev_b32 v{g}, 4, v{lane}")
    e(f"v_and_b32 v{i16}, 15, v{lane}")
    e(f"v_lshlrev_b32 v{VA}, 4, v{lane}")
    e("s_and_b32 s17, s2, 7")
    e("s_mul_i32 s17, s17, 30")
    e("s_lshr_b32 s18, s2, 3")
    e("s_add_u32 s17, s17, s18")
    e("s_lshr_b32 s18, s17, 3")
    e("s_and_b32 s19, s17, 7")
    e("s_waitcnt lgkmcnt(0)")
    e("s_mov_b32 s8, s4")
    e("s_and_b32 s9, s5, 0xffff")
    e(f"s_mov_b32 s10, {WS_USED}")
    e("s_mov_b32 s11, 0x20000")
    e("s_mov_b32 s12, s6")
    e("s_and_b32 s13, s7, 0xffff")
    e("s_mov_b32 s14, 3932160")
    e("s_mov_b32 s15, 0x20000")
    e("s_lshl_b32 s20, s16, 15")
    e("s_lshl_b32 s21, s18, 20")
    e("s_add_u32 s21, s21, s20")
    for mt in range(8):
        e(f"s_add_u32 s{24+mt}, s21, {mt*131072}")
    e("s_lshl_b32 s21, s19, 19")
    e("s_add_u32 s21, s21, s20")
    for nt in range(4):
        e(f"s_add_u32 s{32+nt}, s21, {WF_OFF + nt*131072}")

    def fr(k, i):
        return (k % DEPTH) * 48 + i * 4

    def loads(k):
        out = []
        for i in range(12):
            out.append((f"buffer_load_dwordx4 {ar(fr(k, i))}, v{VA}, s[8:11], s{24+i} offen offset:{(k % 4)*1024}", ("f", k, i)))
        return out

    def adv():
        return [f"s_add_u32 s{24+i}, s{24+i}, 4096" for i in range(12)]

    order = [8, 0, 1, 2, 3, 4, 5, 6, 7, 9, 10, 11]
    for k in range(DEPTH):
        ld = loads(k)
        for i in order:
            p.vm_op(*ld[i])
    for s in adv():
        e(s)
    marks = []
    for k in range(NK):
        if k % 4 == 0:
            marks.append(len(p.L))
        kn = k + DEPTH
        ld = loads(kn) if kn < NK else None
        for m in range(32):
            nt, mt = m >> 3, m & 7
            p.wait_vm([("f", k, 8 + nt), ("f", k, mt)])
            acc = vr(ACC + (nt * 8 + mt) * 4)
            e(mfma(acc, ar(fr(k, 8 + nt)), ar(fr(k, mt)), "0" if k == 0 else acc))
            if k >= 1 and (k - 1 + DEPTH) < NK and m < 24 and m % 2 == 0:
                l2 = loads(k - 1 + DEPTH)
                p.vm_op(*l2[order[m // 2]])
            if k >= 1 and (k - 1 + DEPTH) < NK and (k - 1) % 4 == 3 and m >= 24:
                a = adv()
                e(a[m - 24])
                if m == 31:
                    for s in a[8:]:
                        e(s)
    marks.append(len(p.L))
    e("s_nop 7")
    e("s_nop 7")
    e("s_lshl_b32 s20, s16, 13")
    e(f"v_add_u32 v{T}, s20, v{VA}")
    for dw in range(4):
        for nt in range(4):
            for h in range(2):
                a = ACC + (nt * 8 + 2 * dw + h) * 4
                off = dw * 32768 + (nt * 2 + h) * 1024
                if off < 65536:
                    p.lds_op(f"ds_write_b128 v{T}, {vr(a)} offset:{off}")
                else:
                    if dw == 2 and nt == 0 and h == 0:
                        e(f"v_add_u32 v{T+1}, 0x10000, v{T}")
                    p.lds_op(f"ds_write_b128 v{T+1}, {vr(a)} offset:{off-65536}")
    p.wait_lds_all()
    e("s_barrier")
    e("s_lshl_b32 s20, s16, 15")
    e(f"v_add_u32 v{T}, s20, v{VA}")
    for sw in range(4):
        for t in range(8):
            p.lds_op(f"ds_read_b128 {vr((sw*8+t)*4)}, v{T} offset:{sw*8192 + t*1024}", ("r", sw, t))
            if len(p.lds) - p.lds_done >= 15:
                p.wait_lds([p.lds[p.lds_done + 3]])
    p.wait_lds_all()
    for t in range(8):
        for i in range(4):
            e(f"v_add_f32 v{t*4+i}, v{t*4+i}, v{32+t*4+i}")
            e(f"v_add_f32 v{64+t*4+i}, v{64+t*4+i}, v{96+t*4+i}")
        for i in range(4):
            e(f"v_add_f32 v{t*4+i}, v{t*4+i}, v{64+t*4+i}")
    e(f"v_lshlrev_b32 v{T}, 10, v{i16}")
    e(f"v_lshl_add_u32 v{T}, v{g}, 4, v{T}")
    e("s_lshl_b32 s20, s18, 17")
    e("s_lshl_b32 s21, s16, 15")
    e("s_add_u32 s20, s20, s21")
    e("s_lshl_b32 s21, s19, 7")
    e("s_add_u32 s20, s20, s21")
    for h in range(2):
        for N in range(2):
            d = 32 + (h * 2 + N) * 4
            for T2 in range(2):
                t = (2 * N + T2) * 2 + h
                e(f"v_cvt_pk_bf16_f32 v{d+T2*2}, v{t*4}, v{t*4+1}")
                e(f"v_cvt_pk_bf16_f32 v{d+T2*2+1}, v{t*4+2}, v{t*4+3}")
            e(f"s_add_u32 s21, s20, {h*16384}")
            p.vm_op(f"buffer_store_dwordx4 {vr(d)}, v{T}, s[12:15], s21 offen offset:{N*64}")
    L = p.L
    rs = [(marks[i], marks[i + 1]) for i in range(1, 7)]
    out = L[:rs[0][0]] + fold(L, rs, "L_k2", 40) + L[rs[-1][1]:]
    return out


def kernel_desc(name, vgpr, accum, sgpr):
    return [
        f".amdhsa_kernel {name}",
        f"  .amdhsa_next_free_vgpr {vgpr}",
        f"  .amdhsa_next_free_sgpr {sgpr}",
        f"  .amdhsa_accum_offset {accum}",
        "  .amdhsa_group_segment_fixed_size 0",
        "  .amdhsa_kernarg_size 64",
        "  .amdhsa_user_sgpr_count 2",
        "  .amdhsa_user_sgpr_kernarg_segment_ptr 1",
        "  .amdhsa_system_sgpr_workgroup_id_x 1",
        ".end_amdhsa_kernel",
    ]


def main(path, opts):
    out = []
    out.append(f"; @launch kernel=gqa_attn_kernel grid=(256,1,1) block=(256,1,1) lds={LDS_BYTES}")
    if not opts.get("k1only"):
        out.append("; @launch kernel=gqa_oproj_kernel grid=(240,1,1) block=(256,1,1) lds=131072")
    out.append('.amdgcn_target "amdgcn-amd-amdhsa--gfx950"')
    out.append(".text")
    out += [".globl gqa_attn_kernel", ".p2align 8", ".type gqa_attn_kernel,@function", "gqa_attn_kernel:"]
    out += k1_text(opts)
    out += ["L_k1_done:", "s_endpgm"]
    out += [".globl gqa_oproj_kernel", ".p2align 8", ".type gqa_oproj_kernel,@function", "gqa_oproj_kernel:"]
    out += k2_text(opts)
    out += ["L_k2_done:", "s_endpgm"]
    out += ['.section .rodata,"a"', ".p2align 6"]
    out += kernel_desc("gqa_attn_kernel", 512, 256, 96)
    out += [".p2align 6"]
    out += kernel_desc("gqa_oproj_kernel", 448, 256, 64)
    open(path, "w").write("\n".join(out) + "\n")


if __name__ == "__main__":
    opts = {}
    for a in sys.argv[2:]:
        k, _, v = a.partition("=")
        opts[k] = int(v) if v else 1
    main(sys.argv[1], opts)
```

```python
import sys, struct
from collections import deque

NSLOT = 10
SLOT = 16384
LDS_BYTES = NSLOT * SLOT
OF_BYTES = 240 * 128 * 1024
WF_OFF = OF_BYTES
WF_BYTES = 32 * 128 * 1024
WS_USED = OF_BYTES + WF_BYTES
SCALE = 1.4426950408889634 * (128 ** -0.5)


def f32bits(x):
    return struct.unpack("<I", struct.pack("<f", x))[0]


class Prog:
    def __init__(self):
        self.L = []
        self.lds = []
        self.lds_done = 0
        self.vm = []
        self.vm_done = 0

    def e(self, s):
        self.L.append(s)

    def lds_op(self, s, tag=None):
        self.L.append(s)
        self.lds.append(tag)

    def vm_op(self, s, tag=None):
        self.L.append(s)
        self.vm.append(tag)

    def _need(self, q, done, tags):
        idx = -1
        for t in tags:
            for i in range(len(q) - 1, -1, -1):
                if q[i] == t:
                    idx = max(idx, i)
                    break
            else:
                raise RuntimeError(f"tag {t} never issued")
        return idx + 1

    def wait_lds(self, tags):
        need = self._need(self.lds, self.lds_done, tags)
        if need <= self.lds_done:
            return False
        n = min(len(self.lds) - need, 15)
        self.L.append(f"s_waitcnt lgkmcnt({n})")
        self.lds_done = len(self.lds) - n
        return True

    def wait_vm(self, tags):
        need = self._need(self.vm, self.vm_done, tags)
        if need <= self.vm_done:
            return False
        n = len(self.vm) - need
        n = min(n, 63)
        self.L.append(f"s_waitcnt vmcnt({n})")
        self.vm_done = len(self.vm) - n
        return True

    def wait_lds_all(self):
        self.L.append("s_waitcnt lgkmcnt(0)")
        self.lds_done = len(self.lds)

    def wait_vm_all(self):
        self.L.append("s_waitcnt vmcnt(0)")
        self.vm_done = len(self.vm)


V_O = 0
V_S = 128
V_P = 160
V_C = 176
V_KA = 192
V_VA = 196
V_DK = 204
V_DV = 208
V_L = 210
V_LN16 = 214
V_WA = 215
V_XA = 219
V_DW = 223
V_DX = 224
V_T = 226
V_DWO = 250
V_WOA = 251
A_QA = 0
A_QB = 64
A_ACC1 = 128
A_KF = 128
A_VF = 160

S_X, S_W, S_K, S_V, S_WS, S_WO = 4, 8, 12, 16, 20, 24
S_WAVE, S_W4K, S_PROD = 28, 29, 30
S_WOFF, S_XOFF, S_KOFF, S_VOFF = 31, 32, 33, 34
S_CONS = 35
S_T0, S_T1, S_T2, S_T3 = 36, 37, 38, 39
S_LOOP, S_HEAD = 40, 41
S_SCALE = 42
S_SCALE2 = 58
S_OOFF = 44
S_KB, S_VB, S_WB, S_XB0, S_XB1 = 48, 49, 50, 51, 52
S_BIG = 53
S_B, S_HP = 54, 55
S_WOOFF, S_WOST = 43, 56


def vr(b, n=4):
    return f"v[{b}:{b+n-1}]"


def ar(b, n=4):
    return f"a[{b}:{b+n-1}]"


def mfma(d, a, b, c):
    return f"v_mfma_f32_16x16x32_bf16 {d}, {a}, {b}, {c}"


class K1:
    def __init__(self, opts):
        self.p = Prog()
        self.o = opts
        self.fill_idx = 0
        self.nstamp = 0
        self.pending = deque()

    @staticmethod
    def slot_desc(n):
        if n < 32:
            ch, r = divmod(n, 4)
            return [("W", 2 * ch), ("X", (ch, 0)), ("X", (ch, 1)), ("W", 2 * ch + 1)][r]
        if n == 32:
            return ("WO", 0)
        n -= 33
        return ("K", n // 2) if n % 2 == 0 else ("V", n // 2)

    def adv(self, s):
        return [f"s_add_u32 s{s}, s{s}, {SLOT}",
                f"s_cmp_eq_u32 s{s}, {LDS_BYTES}",
                f"s_cselect_b32 s{s}, 0, s{s}"]

    def fill_instrs(self):
        n = self.fill_idx
        self.fill_idx += 1
        typ, par = self.slot_desc(n)
        out = [(f"s_add_u32 m0, s{S_PROD}, s{S_W4K}", "s")]
        nt = " nt" if self.o.get("nt", True) else ""
        if typ == "W":
            for p in range(4):
                out.append((f"s_add_u32 s{S_T0}, s{S_WOFF}, {p * 31744}", "s"))
                out.append((f"buffer_load_dwordx4 v{V_DW}, s[{S_W}:{S_W+3}], s{S_T0} offen offset:{p*1024}{self.pol('wpol')} lds", ("vm", n)))
            out.append((f"s_add_u32 s{S_WOFF}, s{S_WOFF}, {32 * 8192}", "s"))
        elif typ == "X":
            ch, half = par
            for p in range(4):
                out.append((f"s_add_u32 s{S_T0}, s{S_XOFF}, {half * 32768 + p * 7168}", "s"))
                out.append((f"buffer_load_dwordx4 v{V_DX + (p & 1)}, s[{S_X}:{S_X+3}], s{S_T0} offen offset:{p*1024}{self.pol('xpol')} lds", ("vm", n)))
            if half == 1:
                out.append((f"s_add_u32 s{S_XOFF}, s{S_XOFF}, 128", "s"))
        elif typ == "WO":
            for p in range(4):
                out.append((f"s_add_u32 s{S_T0}, s{S_WOOFF}, {p * 1024}", "s"))
                out.append((f"buffer_load_dwordx4 v{V_DWO}, s[{S_WO}:{S_WO+3}], s{S_T0} offen offset:{p*1024} lds", ("vm", n)))
        elif typ == "K":
            out.append(("s_nop 0", "s"))
            for p in range(4):
                out.append((f"buffer_load_dwordx4 v{V_DK + p}, s[{S_K}:{S_K+3}], s{S_KOFF} offen offset:{p*1024}{nt} lds", ("vm", n)))
            out.append((f"s_add_u32 s{S_KOFF}, s{S_KOFF}, {SLOT}", "s"))
        else:
            out.append(("s_nop 0", "s"))
            for p in range(4):
                out.append((f"buffer_load_dwordx4 v{V_DV + (p & 1)}, s[{S_V}:{S_V+3}], s{S_VOFF} offen offset:{p*1024}{nt} lds", ("vm", n)))
            out.append((f"s_add_u32 s{S_VOFF}, s{S_VOFF}, {SLOT}", "s"))
        for a in self.adv(S_PROD):
            out.append((a, "s"))
        return out

    def emit_item(self, it):
        text, kind = it
        if isinstance(kind, tuple) and kind[0] == "vm":
            self.p.vm_op(text, ("slot", kind[1]))
        elif isinstance(kind, tuple) and kind[0] == "lds":
            self.p.lds_op(text, kind[1])
        else:
            self.p.e(text)

    def open_slot(self, base_sgpr, addr_regs):
        salu = [f"s_sub_u32 s{S_T1}, s{S_CONS}, s{base_sgpr}",
                f"s_mov_b32 s{base_sgpr}, s{S_CONS}"] + self.adv(S_CONS)
        valu = [f"v_add_u32 v{r}, s{S_T1}, v{r}" for r in addr_regs]
        return salu, valu

    def stamp(self, force=False):
        if not self.o.get("stamp"):
            return
        if self.o.get("stampq") and not force:
            return
        i = self.nstamp
        self.nstamp += 1
        assert i < 14
        p = self.p
        p.e("s_memtime s[68:69]")
        p.e("s_memrealtime s[70:71]")
        p.wait_lds_all()
        p.e(f"s_mov_b32 s{72+i}, s68")
        p.e(f"s_mov_b32 s{86+i}, s70")

    def stamp_out(self):
        if not self.o.get("stamp"):
            return
        p = self.p
        p.e(f"s_mov_b32 s{S_WS+2}, {WS_USED + 1024*128 + 4096}")
        p.e(f"s_lshl_b32 s{S_T0}, s2, 2")
        p.e(f"s_add_u32 s{S_T0}, s{S_T0}, s{S_WAVE}")
        p.e(f"s_lshl_b32 s{S_T0}, s{S_T0}, 7")
        p.e(f"s_add_u32 s{S_T0}, s{S_T0}, {WS_USED}")
        p.e(f"v_mov_b32 v{V_T+1}, 0")
        for i in range(28):
            p.e(f"v_mov_b32 v{V_T}, s{72+i}")
            p.e(f"buffer_store_dword v{V_T}, v{V_T+1}, s[{S_WS}:{S_WS+3}], s{S_T0} offen offset:{i*4}")
            p.e("s_nop 1")

    def prologue(self):
        p = self.p
        e = p.e
        e("s_cmp_ge_u32 s2, 256")
        e("s_cbranch_scc1 L_k1_done")
        e("s_load_dwordx8 s[64:71], s[0:1], 0")
        e("s_load_dwordx2 s[100:101], s[0:1], 32")
        e("s_load_dwordx2 s[56:57], s[0:1], 56")
        e(f"v_and_b32 v{V_T}, 63, v0")
        e(f"v_lshrrev_b32 v{V_T+1}, 6, v0")
        e("s_nop 0")
        e(f"v_readfirstlane_b32 s{S_WAVE}, v{V_T+1}")
        L, G, I16, R4, C4, Q = V_T, V_T + 1, V_T + 2, V_T + 3, V_T + 4, V_T + 5
        T0, T1, T2 = V_T + 6, V_T + 7, V_T + 8
        e(f"v_lshrrev_b32 v{G}, 4, v{L}")
        e(f"v_and_b32 v{I16}, 15, v{L}")
        e(f"v_lshrrev_b32 v{R4}, 2, v{I16}")
        e(f"v_and_b32 v{C4}, 3, v{I16}")
        e(f"v_lshlrev_b32 v{V_LN16}, 4, v{L}")
        if self.o.get("cpf", 1):
            e("s_getpc_b64 s[60:61]")
            e("L_pc:")
            e("s_sub_u32 s60, s60, L_pc-gqa_attn_kernel")
            e("s_subb_u32 s61, s61, 0")
            e("s_and_b32 s61, s61, 0xffff")
            e("s_mov_b32 s62, L_text_end-gqa_attn_kernel")
            e("s_mov_b32 s63, 0x20000")
            e(f"v_lshlrev_b32 v{T0}, 7, v{L}")
            e(f"s_lshl_b32 s{S_T0}, s{S_WAVE}, 13")
            for i in range(self.o.get("cpfn", 3)):
                p.vm_op(f"buffer_load_dword v{V_T+12+i}, v{T0}, s[60:63], s{S_T0} offen", "cpf")
                e(f"s_add_u32 s{S_T0}, s{S_T0}, 32768")
        e(f"s_and_b32 s{S_T0}, s2, 7")
        e(f"s_lshl_b32 s{S_T0}, s{S_T0}, 1")
        e(f"s_lshr_b32 s{S_T1}, s2, 3")
        e(f"s_and_b32 s{S_T1}, s{S_T1}, 1")
        e(f"s_add_u32 s{S_B}, s{S_T0}, s{S_T1}")
        e(f"s_lshr_b32 s{S_HP}, s2, 4")
        e(f"s_lshl_b32 s{S_W4K}, s{S_WAVE}, 12")
        for ks in range(4):
            e(f"v_add_u32 v{T0}, {4*ks}, v{G}")
            e(f"v_xor_b32 v{T0}, v{T0}, v{I16}")
            e(f"v_lshlrev_b32 v{T0}, 4, v{T0}")
            e(f"v_lshl_add_u32 v{V_KA+ks}, v{I16}, 8, v{T0}")
        e(f"v_lshl_add_u32 v{T1}, v{G}, 2, v{R4}")
        e(f"v_and_b32 v{T2}, 7, v{T1}")
        for dt in range(8):
            e(f"v_xor_b32 v{T0}, {dt}, v{T2}")
            e(f"v_lshlrev_b32 v{T0}, 5, v{T0}")
            e(f"v_lshl_add_u32 v{T0}, v{T1}, 8, v{T0}")
            e(f"v_lshl_add_u32 v{V_VA+dt}, v{C4}, 3, v{T0}")
        e(f"v_lshl_add_u32 v{T1}, v{G}, 3, v{R4}")
        for D in range(4):
            e(f"v_xor_b32 v{T0}, {D}, v{R4}")
            e(f"v_lshlrev_b32 v{T0}, 6, v{T0}")
            e(f"v_lshl_add_u32 v{T0}, v{T1}, 8, v{T0}")
            e(f"v_lshl_add_u32 v{V_WA+D}, v{C4}, 4, v{T0}")
        e(f"v_lshrrev_b32 v{T1}, 1, v{I16}")
        for half in range(2):
            for ks2 in range(2):
                e(f"v_add_u32 v{T0}, {4*ks2}, v{G}")
                e(f"v_xor_b32 v{T0}, v{T0}, v{T1}")
                e(f"v_lshlrev_b32 v{T0}, 4, v{T0}")
                e(f"v_lshl_add_u32 v{T0}, v{I16}, 7, v{T0}")
                e(f"v_add_u32 v{V_XA+half*2+ks2}, s{S_W4K}, v{T0}")
        for pp in range(4):
            e(f"v_add_u32 v{T0}, {4*pp}, v{G}")
            e(f"v_xor_b32 v{T0}, v{T0}, v{I16}")
            e(f"v_lshlrev_b32 v{T0}, 4, v{T0}")
            e(f"v_lshl_add_u32 v{V_DK+pp}, v{G}, 8, v{T0}")
        for pp in range(2):
            e(f"v_add_u32 v{T0}, {4*pp}, v{G}")
            e(f"v_lshlrev_b32 v{T0}, 1, v{T0}")
            e(f"v_xor_b32 v{T0}, v{T0}, v{I16}")
            e(f"v_lshlrev_b32 v{T0}, 4, v{T0}")
            e(f"v_lshl_add_u32 v{V_DV+pp}, v{G}, 8, v{T0}")
        e(f"v_lshlrev_b32 v{T0}, 2, v{G}")
        e(f"v_xor_b32 v{T0}, v{T0}, v{I16}")
        e(f"v_lshlrev_b32 v{T0}, 4, v{T0}")
        e(f"v_lshl_add_u32 v{V_DW}, v{G}, 13, v{T0}")
        e(f"v_lshrrev_b32 v{T1}, 3, v{L}")
        e(f"v_and_b32 v{T2}, 7, v{L}")
        for pp in range(2):
            e(f"v_add_u32 v{T0}, {4*pp}, v{G}")
            e(f"v_xor_b32 v{T0}, v{T0}, v{T2}")
            e(f"v_lshlrev_b32 v{T0}, 4, v{T0}")
            e(f"v_lshl_add_u32 v{V_DX+pp}, v{T1}, 10, v{T0}")
        e("s_waitcnt lgkmcnt(0)")
        e(f"s_mul_i32 s{S_T0}, s{S_B}, 245760")
        e(f"s_add_u32 s{S_X}, s64, s{S_T0}")
        e(f"s_addc_u32 s{S_X+1}, s65, 0")
        e(f"s_and_b32 s{S_X+1}, s{S_X+1}, 0xffff")
        e(f"s_mov_b32 s{S_X+2}, 245760")
        e(f"s_mov_b32 s{S_X+3}, 0x20000")
        e(f"s_lshl_b32 s{S_T0}, s{S_HP}, 9")
        e(f"s_add_u32 s{S_W}, s70, s{S_T0}")
        e(f"s_addc_u32 s{S_W+1}, s71, 0")
        e(f"s_and_b32 s{S_W+1}, s{S_W+1}, 0xffff")
        e(f"s_sub_u32 s{S_W+2}, 4194304, s{S_T0}")
        e(f"s_mov_b32 s{S_W+3}, 0x20000")
        e(f"s_lshl_b32 s{S_T0}, s{S_B}, 22")
        e(f"s_lshl_b32 s{S_T1}, s{S_HP}, 18")
        e(f"s_add_u32 s{S_T0}, s{S_T0}, s{S_T1}")
        e(f"s_add_u32 s{S_K}, s66, s{S_T0}")
        e(f"s_addc_u32 s{S_K+1}, s67, 0")
        e(f"s_and_b32 s{S_K+1}, s{S_K+1}, 0xffff")
        e(f"s_mov_b32 s{S_K+2}, 262144")
        e(f"s_mov_b32 s{S_K+3}, 0x20000")
        e(f"s_add_u32 s{S_V}, s68, s{S_T0}")
        e(f"s_addc_u32 s{S_V+1}, s69, 0")
        e(f"s_and_b32 s{S_V+1}, s{S_V+1}, 0xffff")
        e(f"s_mov_b32 s{S_V+2}, 262144")
        e(f"s_mov_b32 s{S_V+3}, 0x20000")
        e(f"s_mov_b32 s{S_WS}, s56")
        e(f"s_and_b32 s{S_WS+1}, s57, 0xffff")
        e(f"s_mov_b32 s{S_WS+2}, {WS_USED}")
        e(f"s_mov_b32 s{S_WS+3}, 0x20000")
        e(f"s_mov_b32 s{S_WO}, s100")
        e(f"s_and_b32 s{S_WO+1}, s101, 0xffff")
        e(f"s_mov_b32 s{S_WO+2}, 4194304")
        e(f"s_mov_b32 s{S_WO+3}, 0x20000")
        e(f"s_and_b32 s{S_T0}, s{S_WAVE}, 1")
        e(f"s_lshl_b32 s{S_T0}, s{S_T0}, 17")
        e(f"s_lshr_b32 s{S_T1}, s{S_WAVE}, 1")
        e(f"s_lshl_b32 s{S_T1}, s{S_T1}, 8")
        e(f"s_add_u32 s{S_WOFF}, s{S_T0}, s{S_T1}")
        e(f"s_lshl_b32 s{S_XOFF}, s{S_WAVE}, 16")
        e(f"s_mov_b32 s{S_KOFF}, s{S_W4K}")
        e(f"s_mov_b32 s{S_VOFF}, s{S_W4K}")
        e(f"s_mov_b32 s{S_PROD}, 0")
        e(f"s_mov_b32 s{S_CONS}, 0")
        for s in (S_KB, S_VB, S_WB, S_XB0, S_XB1):
            e(f"s_mov_b32 s{s}, 0")
        e(f"s_mov_b32 s{S_SCALE}, {f32bits(SCALE):#x}")
        e(f"s_mov_b32 s{S_SCALE2}, {f32bits(SCALE):#x}")
        e(f"s_mov_b32 s{S_SCALE2+1}, {f32bits(SCALE):#x}")
        e(f"s_mul_i32 s{S_T0}, s{S_B}, 15")
        e(f"s_lshl_b32 s{S_T1}, s{S_WAVE}, 2")
        e(f"s_add_u32 s{S_T0}, s{S_T0}, s{S_T1}")
        e(f"s_lshl_b32 s{S_T0}, s{S_T0}, 17")
        e(f"s_lshl_b32 s{S_T1}, s{S_HP}, 13")
        e(f"s_add_u32 s{S_OOFF}, s{S_T0}, s{S_T1}")
        for qt in range(1, 4):
            e(f"s_add_u32 s{S_OOFF+qt}, s{S_OOFF}, {qt*131072}")
        e(f"s_cmp_eq_u32 s{S_WAVE}, 3")
        e(f"s_cselect_b32 s{S_OOFF+3}, 0x7f000000, s{S_OOFF+3}")
        e(f"v_lshrrev_b32 v{T0}, 5, v{L}")
        e(f"v_and_b32 v{T1}, 31, v{L}")
        e(f"v_lshlrev_b32 v{T1}, 4, v{T1}")
        e(f"v_lshl_add_u32 v{V_DWO}, v{T0}, 10, v{T1}")
        e(f"s_lshr_b32 s{S_T0}, s2, 1")
        e(f"s_lshl_b32 s{S_T0}, s{S_T0}, 15")
        e(f"s_and_b32 s{S_T1}, s2, 1")
        e(f"s_lshl_b32 s{S_T1}, s{S_T1}, 9")
        e(f"s_add_u32 s{S_T0}, s{S_T0}, s{S_T1}")
        e(f"s_lshl_b32 s{S_T1}, s{S_WAVE}, 13")
        e(f"s_add_u32 s{S_WOOFF}, s{S_T0}, s{S_T1}")
        e(f"v_lshl_add_u32 v{T1}, v{G}, 2, v{R4}")
        e(f"v_lshlrev_b32 v{T1}, 9, v{T1}")
        e(f"v_lshl_add_u32 v{T1}, v{C4}, 4, v{T1}")
        e(f"s_lshl_b32 s{S_T0}, s{S_WAVE}, 7")
        e(f"v_add_u32 v{V_WOA}, s{S_T0}, v{T1}")
        e(f"s_and_b32 s{S_T0}, s2, 1")
        e(f"s_lshl_b32 s{S_T0}, s{S_T0}, 4")
        e(f"s_lshl_b32 s{S_T1}, s{S_WAVE}, 2")
        e(f"s_add_u32 s{S_T0}, s{S_T0}, s{S_T1}")
        e(f"s_lshl_b32 s{S_T0}, s{S_T0}, 17")
        e(f"s_lshr_b32 s{S_T1}, s2, 1")
        e(f"s_lshl_b32 s{S_T1}, s{S_T1}, 10")
        e(f"s_add_u32 s{S_T0}, s{S_T0}, s{S_T1}")
        e(f"s_add_u32 s{S_WOST}, s{S_T0}, {WF_OFF}")

    def first_fills(self, n):
        for _ in range(n):
            for it in self.fill_instrs():
                self.emit_item(it)

    def wo_process(self):
        p = self.p
        e = p.e
        e(f"v_add_u32 v{V_WOA}, s{S_CONS}, v{V_WOA}")
        for s in self.adv(S_CONS):
            e(s)
        for j in range(4):
            for r in range(2):
                d = V_S + j * 4 + r * 2
                p.lds_op(f"ds_read_b64_tr_b16 {vr(d,2)}, v{V_WOA} offset:{(j>>1)*64 + (j&1)*8 + r*16*512}", ("wo", j))

    def wo_store(self):
        p = self.p
        p.wait_lds([("wo", 3)])
        for j in range(4):
            p.e(f"s_add_u32 s{S_T1}, s{S_WOST}, {j*131072}")
            p.vm_op(f"buffer_store_dwordx4 {vr(V_S+j*4)}, v{V_LN16}, s[{S_WS}:{S_WS+3}], s{S_T1} offen{self.stpol()}", "wost")
        p.e("s_nop 1")

    def w_read(self, kap, f, r):
        hd, dt = f >> 3, f & 7
        D, T = dt >> 1, dt & 1
        d = V_S + (f & 7) * 4 + r * 2
        return (f"ds_read_b64_tr_b16 {vr(d,2)}, v{V_WA+D} offset:{hd*8192 + r*1024 + T*8}", ("lds", ("w", kap, f)))

    def x_read(self, kap, qt):
        ks2 = kap & 1
        d = V_P + (kap & 1) * 16 + qt * 4
        return (f"ds_read_b128 {vr(d)}, v{V_XA + (qt>>1)*2 + ks2} offset:{(qt&1)*2048}", ("lds", ("x", kap, qt)))

    def free_slots(self, n):
        for _ in range(n):
            self.pending.extend(self.fill_instrs())

    def drain(self, post, vm_gaps, salu_gaps=None):
        vm_gaps = list(vm_gaps)
        if salu_gaps is None:
            for g in vm_gaps:
                while self.pending:
                    it = self.pending.popleft()
                    post[g].append(it)
                    if isinstance(it[1], tuple):
                        break
                while self.pending and not isinstance(self.pending[0][1], tuple) and not self.pending[0][0].startswith("s_add_u32 m0") \
                        and not self.pending[0][0].startswith(f"s_add_u32 s{S_T0},"):
                    post[g].append(self.pending.popleft())
            return
        slots = sorted([(g, "v") for g in vm_gaps] + [(g, "s") for g in salu_gaps])
        for g, kind in slots:
            if not self.pending:
                break
            it = self.pending[0]
            isvm = isinstance(it[1], tuple)
            if it[0] == "s_nop 0":
                self.pending.popleft()
                it = self.pending[0]
                isvm = True
            if isvm != (kind == "v"):
                continue
            post[g].append(self.pending.popleft())
            if it[0].startswith("s_cmp"):
                post[g].append(self.pending.popleft())

    def qproj_pre(self):
        p = self.p
        p.wait_vm([("slot", 2)])
        p.e("s_barrier")
        for base, regs in ((S_WB, range(V_WA, V_WA + 4)), (S_XB0, range(V_XA, V_XA + 2)), (S_XB1, range(V_XA + 2, V_XA + 4))):
            salu, valu = self.open_slot(base, regs)
            for s in salu:
                p.e(s)
            for s in valu:
                p.e(s)
        for qt in range(4):
            self.emit_item(self.x_read(0, qt))
        for f in range(7):
            for r in range(2):
                self.emit_item(self.w_read(0, f, r))

    def qproj_step(self, kap):
        p = self.p
        last = kap == 15
        post = [[] for _ in range(64)]
        valu = [[] for _ in range(64)]
        for g in range(64):
            if g % 4 in (0, 1):
                f_cons = g // 4 - 1
                F = kap * 16 + f_cons + 8
                k2, f2 = divmod(F, 16)
                if k2 <= 15 and F >= 7:
                    post[g].append(self.w_read(k2, f2, g % 4))
        if not last:
            salu, v = self.open_slot(S_WB_next(self, kap), range(V_WA, V_WA + 4))
            post[34] += [(s, "s") for s in salu]
            valu[34] += v[:2]
            valu[35] += v[2:]
        if not last:
            if kap & 1:
                for base, regs, g in ((S_XB0, range(V_XA, V_XA + 2), 38), (S_XB1, range(V_XA + 2, V_XA + 4), 39)):
                    salu, v = self.open_slot(base, regs)
                    post[g] += [(s, "s") for s in salu]
                    valu[g] += v
            for qt in range(4):
                post[42 + 4 * qt].append(self.x_read(kap + 1, qt))
        nfree = 0 if kap == 0 else (1 if kap & 1 else 3)
        self.free_slots(nfree)
        nvm = sum(1 for it in self.pending if isinstance(it[1], tuple))
        if nvm > 12:
            vg = range(3, 64, 4)
        else:
            vg = range(3, 64, 8)
        self.drain(post, vg)
        if not last:
            req = (kap + 1) // 2 * 4 + (3 if (kap + 1) & 1 else 2)
        else:
            req = None
        for g in range(64):
            f, qt = g >> 2, g & 3
            hd, dt = f >> 3, f & 7
            need = [("w", kap, f)]
            if f == 0:
                need.append(("x", kap, qt))
            p.wait_lds(need)
            accb = (dt * 4 + qt) * 4
            acc = vr(V_O + accb) if hd == 0 else ar(A_ACC1 + accb)
            p.e(mfma(acc, vr(V_S + (f & 7) * 4), vr(V_P + (kap & 1) * 16 + qt * 4), "0" if kap == 0 else acc))
            if g == 1:
                if req is not None and not self.o.get("novmq"):
                    p.wait_vm([("slot", req)])
                if not self.o.get("nobarq"):
                    p.e("s_barrier")
            for it in post[g]:
                if self.o.get("nodmaq") and isinstance(it[1], tuple) and it[1][0] == "vm":
                    self.p.vm.append(("slot", it[1][1]))
                    continue
                self.emit_item(it)
            for s in valu[g]:
                p.e(s)

    def qconvert(self):
        p = self.p
        p.wait_vm([("slot", 33)])
        p.e("s_barrier")
        self.free_slots(3)
        self.wo_process()
        salu, v = self.open_slot(S_KB, range(V_KA, V_KA + 4))
        for s in salu + v:
            p.e(s)
        T = V_T
        cnt = 0
        for hd in (1, 0):
            dst = A_QA if hd == 0 else A_QB
            for ks in range(4):
                for qt in range(4):
                    for T2 in range(2):
                        accb = ((2 * ks + T2) * 4 + qt) * 4
                        if hd == 0:
                            src = [V_O + accb + i for i in range(4)]
                        else:
                            src = [T + T2 * 4 + i for i in range(4)]
                            for i in range(4):
                                p.e(f"v_accvgpr_read_b32 v{src[i]}, a{A_ACC1+accb+i}")
                        if self.o.get("pkmul", 1):
                            for i in (0, 2):
                                p.e(f"v_pk_mul_f32 {vr(src[i],2)}, {vr(src[i],2)}, s[{S_SCALE2}:{S_SCALE2+1}]")
                        else:
                            for i in range(4):
                                p.e(f"v_mul_f32 v{src[i]}, s{S_SCALE}, v{src[i]}")
                        p.e(f"v_cvt_pk_bf16_f32 v{T+8+T2*2}, v{src[0]}, v{src[1]}")
                        p.e(f"v_cvt_pk_bf16_f32 v{T+8+T2*2+1}, v{src[2]}, v{src[3]}")
                    for i in range(4):
                        p.e(f"v_accvgpr_write_b32 a{dst + (qt*4+ks)*4 + i}, v{T+8+i}")
                    cnt += 1
                    if cnt % 2 == 0:
                        post = [[]]
                        self.drain(post, [0])
                        for it in post[0]:
                            self.emit_item(it)
                if hd == 1 and ks == 0:
                    for k in range(8):
                        self.emit_item(self.k_read(0, k >> 2, k & 3))
                    self.wo_store()
        assert not self.pending

    def k_read(self, j, kt, ks):
        d = A_KF + (kt * 4 + ks) * 4
        return (f"ds_read_b128 {ar(d)}, v{V_KA+ks} offset:{(j&1)*8192 + kt*4096}", ("lds", ("k", j, kt, ks)))

    def v_read(self, j, dt, r):
        d = A_VF + dt * 4 + r * 2
        return (f"ds_read_b64_tr_b16 {ar(d,2)}, v{V_VA+dt} offset:{(j&1)*8192 + r*4096}", ("lds", ("v", j, dt)))

    def softmax_ops(self, qt):
        regs = [V_S + (kt * 4 + qt) * 4 + i for kt in range(2) for i in range(4)]
        ex = [f"v_exp_f32 v{r}, v{r}" for r in regs]
        ad = [f"v_add_f32 v{V_L+qt}, v{V_L+qt}, v{r}" for r in regs]
        cv = [f"v_cvt_pk_bf16_f32 v{V_P+qt*4+i}, v{regs[2*i]}, v{regs[2*i+1]}" for i in range(4)]
        return ex, ad, cv

    def attn_step(self, head, j):
        p = self.p
        J = 16 * head + j
        hasqk = j < 15
        haspv = j >= 0
        post = [[] for _ in range(64)]
        valu = [[] for _ in range(64)]
        if haspv:
            for k in range(16):
                post[2 * k + 1].append(self.v_read(J, k >> 1, k & 1))
        if j < 14:
            for k in range(8):
                post[37 + 2 * k].append(self.k_read(J + 2, k >> 2, k & 3))
        if j < 14 and (j & 1) == 0:
            salu, v = self.open_slot(S_KB, range(V_KA, V_KA + 4))
            post[32] += [(s, "s") for s in salu[:3]]
            post[34] += [(s, "s") for s in salu[3:]]
            for i, s in enumerate(v):
                valu[33 + (i >> 1) * 2].append(s)
        if j < 15 and ((j + 1) & 1) == 0:
            salu, v = self.open_slot(S_VB, range(V_VA, V_VA + 8))
            post[50] += [(s, "s") for s in salu[:3]]
            post[52] += [(s, "s") for s in salu[3:]]
            for i, s in enumerate(v):
                valu[55 + (i >> 1) * 2].append(s)
        if j >= 1 or (j == 0 and head == 0):
            self.free_slots(1)
        self.drain(post, [8, 24, 40, 56], [2, 58, 60, 62])
        assert not self.pending
        def place(qt, g0):
            ex, ad, cv = self.softmax_ops(qt)
            for i in range(8):
                valu[g0 + 2 * i].append(ex[i])
                valu[g0 + 2 * i + 1].insert(0, ad[i])
            return cv
        if haspv:
            cv3 = place(3, 0)
            for i in range(4):
                valu[17 + 2 * i].append(cv3[i])
        if hasqk and j >= 0:
            cv0 = place(0, 16)
            cv1 = place(1, 32)
            cv2 = place(2, 48)
            for i in range(4):
                valu[41 + 2 * i].append(cv0[i])
                valu[53 + 2 * i].append(cv1[i])
            self.pending_cv2 = cv2
        if haspv and j >= 0:
            for i, s in enumerate(self.prev_cv2):
                valu[1 + 2 * i].append(s)
        A0 = 33
        req = None
        if j >= 0 and (j & 1) == 0:
            req = A0 + J + 2 if j < 14 else A0 + J + 1
        gaps = list(range(64))
        if not hasqk:
            pass
        for g in gaps:
            isqk = g < 32
            if isqk and not hasqk:
                mf = None
            elif (not isqk) and not haspv:
                mf = None
            elif isqk:
                qt, kt, ks = g >> 3, (g >> 2) & 1, g & 3
                if qt == 0:
                    p.wait_lds([("k", J + 1, kt, ks)])
                s = vr(V_S + (kt * 4 + qt) * 4)
                c = s if ks else ("0" if j == -1 else vr(V_C + qt * 4))
                mf = mfma(s, ar(A_KF + (kt * 4 + ks) * 4), ar(A_QA + (qt * 4 + ks) * 4), c)
            else:
                qt, dt = (g - 32) >> 3, (g - 32) & 7
                if qt == 0:
                    p.wait_lds([("v", J, dt)])
                o = vr(V_O + (dt * 4 + qt) * 4)
                mf = mfma(o, ar(A_VF + dt * 4), vr(V_P + qt * 4), "0" if j == 0 else o)
            if mf:
                p.e(mf)
            if g == 0 and j >= 0:
                if req is not None:
                    p.wait_vm([("slot", req)])
                p.e("s_barrier")
            for it in post[g]:
                self.emit_item(it)
            vl = valu[g]
            for s in vl:
                p.e(s)
            if not mf and vl:
                p.e("s_nop 0")
            if j == -1 and g == 31:
                self.first_tile()
        if hasqk:
            self.prev_cv2 = self.pending_cv2

    def first_tile(self):
        p = self.p
        p.e("s_nop 7")
        p.e("s_nop 3")
        T = V_T
        for qt in range(4):
            r = [V_S + (kt * 4 + qt) * 4 + i for kt in range(2) for i in range(4)]
            p.e(f"v_max3_f32 v{T+qt}, v{r[0]}, v{r[1]}, v{r[2]}")
            p.e(f"v_max3_f32 v{T+4+qt}, v{r[3]}, v{r[4]}, v{r[5]}")
            p.e(f"v_max3_f32 v{T+qt}, v{T+qt}, v{r[6]}, v{r[7]}")
            p.e(f"v_max_f32 v{T+qt}, v{T+qt}, v{T+4+qt}")
        for qt in range(4):
            p.e(f"v_mov_b32 v{T+4+qt}, v{T+qt}")
        p.e("s_nop 1")
        for qt in range(4):
            p.e(f"v_permlane16_swap_b32 v{T+qt}, v{T+4+qt}")
        p.e("s_nop 1")
        for qt in range(4):
            p.e(f"v_max_f32 v{T+qt}, v{T+qt}, v{T+4+qt}")
        for qt in range(4):
            p.e(f"v_mov_b32 v{T+4+qt}, v{T+qt}")
        p.e("s_nop 1")
        for qt in range(4):
            p.e(f"v_permlane32_swap_b32 v{T+qt}, v{T+4+qt}")
        p.e("s_nop 1")
        for qt in range(4):
            p.e(f"v_max_f32 v{T+qt}, v{T+qt}, v{T+4+qt}")
        p.e(f"v_max_f32 v{T+3}, s{S_BIG}, v{T+3}")
        for qt in range(4):
            for i in range(4):
                p.e(f"v_sub_f32 v{V_C+qt*4+i}, 0, v{T+qt}")
            p.e(f"v_mov_b32 v{V_L+qt}, 0")
        for qt in range(4):
            for kt in range(2):
                for i in range(4):
                    r = V_S + (kt * 4 + qt) * 4 + i
                    p.e(f"v_sub_f32 v{r}, v{r}, v{T+qt}")
        for qt in range(3):
            ex, ad, cv = self.softmax_ops(qt)
            for s in ex:
                p.e(s)
            p.e("s_nop 0")
            for s in ad:
                p.e(s)
            if qt < 2:
                for s in cv:
                    p.e(s)
            else:
                self.pending_cv2 = cv

    def head_pre(self, head):
        p = self.p
        J = 16 * head
        p.wait_vm([("slot", 33 + J)])
        p.e("s_barrier")
        self.free_slots(1)
        salu, v = self.open_slot(S_KB, range(V_KA, V_KA + 4))
        for s in salu + v:
            p.e(s)
        for k in range(8):
            self.emit_item(self.k_read(J, k >> 2, k & 3))

    def epilogue(self, head):
        p = self.p
        T = V_T
        p.e("s_nop 7")
        for qt in range(4):
            p.e(f"v_mov_b32 v{T+4+qt}, v{V_L+qt}")
        p.e("s_nop 1")
        for qt in range(4):
            p.e(f"v_permlane16_swap_b32 v{V_L+qt}, v{T+4+qt}")
        p.e("s_nop 1")
        for qt in range(4):
            p.e(f"v_add_f32 v{V_L+qt}, v{V_L+qt}, v{T+4+qt}")
        for qt in range(4):
            p.e(f"v_mov_b32 v{T+4+qt}, v{V_L+qt}")
        p.e("s_nop 1")
        for qt in range(4):
            p.e(f"v_permlane32_swap_b32 v{V_L+qt}, v{T+4+qt}")
        p.e("s_nop 1")
        for qt in range(4):
            p.e(f"v_add_f32 v{V_L+qt}, v{V_L+qt}, v{T+4+qt}")
        for qt in range(4):
            p.e(f"v_rcp_f32 v{T+qt}, v{V_L+qt}")
        p.e("s_nop 0")
        k = 0
        for qt in range(4):
            for s in range(4):
                d = T + 8 + (k & 1) * 4
                k += 1
                for T2 in range(2):
                    b = V_O + ((2 * s + T2) * 4 + qt) * 4
                    for i in range(4):
                        p.e(f"v_mul_f32 v{b+i}, v{b+i}, v{T+qt}")
                    p.e(f"v_cvt_pk_bf16_f32 v{d+T2*2}, v{b}, v{b+1}")
                    p.e(f"v_cvt_pk_bf16_f32 v{d+T2*2+1}, v{b+2}, v{b+3}")
                p.vm_op(f"buffer_store_dwordx4 {vr(d)}, v{V_LN16}, s[{S_WS}:{S_WS+3}], s{S_OOFF+qt} offen offset:{s*1024}{self.stpol()}", "ost")
        for qt in range(4):
            p.e(f"s_add_u32 s{S_OOFF+qt}, s{S_OOFF+qt}, 4096")

    def pol(self, k):
        return ["", " sc1", " sc0 sc1", " nt", " sc1 nt", " sc0 sc1 nt", " sc0"][self.o.get(k, 0)]

    def stpol(self):
        return ["", " sc1", " sc0 sc1", " nt", " sc1 nt", " sc0 sc1 nt"][self.o.get("stpol", 0)]

    def build(self):
        p = self.p
        marks = []
        if self.o.get("stamp"):
            for i in range(28):
                p.e(f"s_mov_b32 s{72+i}, 0")
        self.stamp()
        self.prologue()
        self.first_fills(self.o.get("up", 4))
        self.free_slots(NSLOT - self.o.get("up", 4))
        self.stamp()
        p.e(f"s_cmp_eq_u32 s{S_WAVE}, 3")
        p.e(f"s_mov_b32 s{S_T0}, 0xff7fffff")
        p.e(f"s_cselect_b32 s{S_BIG}, 0x7149f2ca, s{S_T0}")
        self.qproj_pre()
        self.stamp()
        for kap in range(16):
            marks.append(("qp", kap, len(p.L)))
            if self.o.get("stampq") == 1 and (kap % 2 == 0 or kap > 12):
                self.stamp(True)
            self.qproj_step(kap)
            if self.o.get("stampq") == 1 and kap == 15:
                self.stamp(True)
        marks.append(("qp", 16, len(p.L)))
        self.stamp()
        self.qconvert()
        self.stamp()
        if self.o.get("dumpq"):
            self.dump_q()
            return marks
        for head in range(2):
            marks.append(("head", head, len(p.L)))
            if head == 1:
                for i in range(64):
                    p.e(f"v_accvgpr_mov_b32 a{A_QA+i}, a{A_QB+i}")
                self.head_pre(head)
            for j in range(-1, 16):
                marks.append(("at", head, j, len(p.L)))
                if self.o.get("stampq") == 2 and head == 0 and j >= 3:
                    self.stamp(True)
                self.attn_step(head, j)
                if j in (0,):
                    self.stamp()
            marks.append(("at", head, 16, len(p.L)))
            self.stamp()
            self.epilogue(head)
            self.stamp()
        marks.append(("head", 2, len(p.L)))
        self.stamp_out()
        return marks

    def dump_q(self):
        p = self.p
        for hd in range(2):
            for qt in range(4):
                for ks in range(4):
                    b = (A_QA if hd == 0 else A_QB) + (qt * 4 + ks) * 4
                    for i in range(4):
                        p.e(f"v_accvgpr_read_b32 v{V_T+i}, a{b+i}")
                    p.vm_op(f"buffer_store_dwordx4 {vr(V_T)}, v{V_LN16}, s[{S_WS}:{S_WS+3}], s{S_OOFF+qt} offen offset:{ks*1024}", "ost")
                    p.e("s_nop 2")
            for qt in range(4):
                p.e(f"s_add_u32 s{S_OOFF+qt}, s{S_OOFF+qt}, 4096")


def S_WB_next(self, kap):
    return S_WB


def fold(lines, ranges, label, counter):
    s0, e0 = ranges[0]
    body = lines[s0:e0]
    for (s, e) in ranges[1:]:
        assert lines[s:e] == body, f"loop {label}: iteration differs"
    n = len(ranges)
    out = [f"s_mov_b32 s{counter}, {n}", f"{label}:"] + body + [
        f"s_sub_u32 s{counter}, s{counter}, 1", f"s_cmp_lg_u32 s{counter}, 0", f"s_cbranch_scc1 {label}"]
    return out


def k1_text(opts):
    k = K1(opts)
    marks = k.build()
    L = k.p.L
    if opts.get("nofold"):
        return L
    pos = {m[:-1]: m[-1] for m in marks}
    out = []
    cur = 0

    def take(upto):
        nonlocal cur
        out.extend(L[cur:upto])
        cur = upto

    def pairs(key, a, b):
        return [(pos[key(i)], pos[key(i + 2)]) for i in range(a, b, 2)]

    def longest_run(rs):
        best = (0, 1)
        i = 0
        while i < len(rs):
            j = i + 1
            while j < len(rs) and L[rs[j][0]:rs[j][1]] == L[rs[i][0]:rs[i][1]]:
                j += 1
            if j - i > best[1]:
                best = (i, j - i)
            i = j
        return rs[best[0]:best[0] + best[1]]

    rs = longest_run(pairs(lambda i: ("qp", i), 1, 15))
    take(rs[0][0])
    out.extend(fold(L, rs, "L_qp", S_LOOP))
    cur = rs[-1][1]
    if opts.get("dumpq"):
        take(len(L))
        return out
    for head in range(2):
        rs = longest_run(pairs(lambda i: ("at", head, i), 1, 15))
        take(rs[0][0])
        out.extend(fold(L, rs, f"L_at{head}", S_LOOP))
        cur = rs[-1][1]
    take(len(L))
    return out


def k2_text(opts):
    p = Prog()
    e = p.e
    DEPTH = opts.get('depth', 4)
    NK = 32
    ACC = 0
    lane, g, i16 = 128, 129, 130
    VA = 131
    T = 132
    nst = [0]
    def stamp():
        if not opts.get("stamp"):
            return
        i = nst[0]; nst[0] += 1
        e("s_memtime s[68:69]")
        e("s_memrealtime s[70:71]")
        p.wait_lds_all()
        e(f"s_mov_b32 s{72+i}, s68")
        e(f"s_mov_b32 s{86+i}, s70")
    e("s_cmp_ge_u32 s2, 240")
    e("s_cbranch_scc1 L_k2_done")
    if opts.get("stamp"):
        for i in range(28):
            e(f"s_mov_b32 s{72+i}, 0")
    stamp()
    e("s_load_dwordx2 s[4:5], s[0:1], 56")
    e("s_load_dwordx2 s[6:7], s[0:1], 40")
    e(f"v_and_b32 v{lane}, 63, v0")
    e(f"v_lshrrev_b32 v{T}, 6, v0")
    e("s_nop 0")
    e(f"v_readfirstlane_b32 s16, v{T}")
    e(f"v_lshrrev_b32 v{g}, 4, v{lane}")
    e(f"v_and_b32 v{i16}, 15, v{lane}")
    e(f"v_lshlrev_b32 v{VA}, 4, v{lane}")
    e("s_and_b32 s17, s2, 7")
    e("s_mul_i32 s17, s17, 30")
    e("s_lshr_b32 s18, s2, 3")
    e("s_add_u32 s17, s17, s18")
    e("s_lshr_b32 s18, s17, 3")
    e("s_and_b32 s19, s17, 7")
    e("s_waitcnt lgkmcnt(0)")
    e("s_mov_b32 s8, s4")
    e("s_and_b32 s9, s5, 0xffff")
    e(f"s_mov_b32 s10, {WS_USED}")
    e("s_mov_b32 s11, 0x20000")
    e("s_mov_b32 s12, s6")
    e("s_and_b32 s13, s7, 0xffff")
    e("s_mov_b32 s14, 3932160")
    e("s_mov_b32 s15, 0x20000")
    e("s_lshl_b32 s20, s16, 15")
    e("s_lshl_b32 s21, s18, 20")
    e("s_add_u32 s21, s21, s20")
    for mt in range(8):
        e(f"s_add_u32 s{24+mt}, s21, {mt*131072}")
    e("s_lshl_b32 s21, s19, 19")
    e("s_add_u32 s21, s21, s20")
    for nt in range(4):
        e(f"s_add_u32 s{32+nt}, s21, {WF_OFF + nt*131072}")

    def fr(k, i):
        st = k % DEPTH
        if st < 5:
            return ar(st * 48 + i * 4)
        return vr(136 + (st - 5) * 48 + i * 4)

    def loads(k):
        out = []
        for i in range(12):
            out.append((f"buffer_load_dwordx4 {fr(k, i)}, v{VA}, s[8:11], s{24+i} offen offset:{(k % 4)*1024}", ("f", k, i)))
        return out

    def adv():
        return [f"s_add_u32 s{24+i}, s{24+i}, 4096" for i in range(12)]

    order = [8, 0, 1, 2, 3, 4, 5, 6, 7, 9, 10, 11]
    for k in range(DEPTH):
        ld = loads(k)
        for i in order:
            p.vm_op(*ld[i])
        if k % 4 == 3:
            for s in adv():
                e(s)
    marks = []
    for k in range(NK):
        if k == 1:
            stamp()
        if k % 4 == 0:
            marks.append(len(p.L))
        kn = k + DEPTH
        ld = loads(kn) if kn < NK else None
        for m in range(32):
            nt, mt = m >> 3, m & 7
            p.wait_vm([("f", k, 8 + nt), ("f", k, mt)])
            acc = vr(ACC + (nt * 8 + mt) * 4)
            e(mfma(acc, fr(k, 8 + nt), fr(k, mt), "0" if k == 0 else acc))
            if k >= 1 and (k - 1 + DEPTH) < NK and m < 24 and m % 2 == 0:
                l2 = loads(k - 1 + DEPTH)
                p.vm_op(*l2[order[m // 2]])
            if k >= 1 and (k - 1 + DEPTH) < NK and (k - 1 + DEPTH) % 4 == 3 and m >= 24:
                a = adv()
                e(a[m - 24])
                if m == 31:
                    for s in a[8:]:
                        e(s)
    marks.append(len(p.L))
    stamp()
    e("s_nop 7")
    e("s_nop 7")
    e("s_lshl_b32 s20, s16, 13")
    e(f"v_add_u32 v{T}, s20, v{VA}")
    for dw in range(4):
        for nt in range(4):
            for h in range(2):
                a = ACC + (nt * 8 + 2 * dw + h) * 4
                off = dw * 32768 + (nt * 2 + h) * 1024
                if off < 65536:
                    p.lds_op(f"ds_write_b128 v{T}, {vr(a)} offset:{off}")
                else:
                    if dw == 2 and nt == 0 and h == 0:
                        e(f"v_add_u32 v{T+1}, 0x10000, v{T}")
                    p.lds_op(f"ds_write_b128 v{T+1}, {vr(a)} offset:{off-65536}")
    p.wait_lds_all()
    e("s_barrier")
    e("s_lshl_b32 s20, s16, 15")
    e(f"v_add_u32 v{T}, s20, v{VA}")
    for sw in range(4):
        for t in range(8):
            p.lds_op(f"ds_read_b128 {vr((sw*8+t)*4)}, v{T} offset:{sw*8192 + t*1024}", ("r", sw, t))
            if len(p.lds) - p.lds_done >= 15:
                p.wait_lds([p.lds[p.lds_done + 3]])
    p.wait_lds_all()
    for t in range(8):
        for i in range(4):
            e(f"v_add_f32 v{t*4+i}, v{t*4+i}, v{32+t*4+i}")
            e(f"v_add_f32 v{64+t*4+i}, v{64+t*4+i}, v{96+t*4+i}")
        for i in range(4):
            e(f"v_add_f32 v{t*4+i}, v{t*4+i}, v{64+t*4+i}")
    e(f"v_lshlrev_b32 v{T}, 10, v{i16}")
    e(f"v_lshl_add_u32 v{T}, v{g}, 4, v{T}")
    e("s_lshl_b32 s20, s18, 17")
    e("s_lshl_b32 s21, s16, 15")
    e("s_add_u32 s20, s20, s21")
    e("s_lshl_b32 s21, s19, 7")
    e("s_add_u32 s20, s20, s21")
    for h in range(2):
        for N in range(2):
            d = 32 + (h * 2 + N) * 4
            for T2 in range(2):
                t = (2 * N + T2) * 2 + h
                e(f"v_cvt_pk_bf16_f32 v{d+T2*2}, v{t*4}, v{t*4+1}")
                e(f"v_cvt_pk_bf16_f32 v{d+T2*2+1}, v{t*4+2}, v{t*4+3}")
            e(f"s_add_u32 s21, s20, {h*16384}")
            p.vm_op(f"buffer_store_dwordx4 {vr(d)}, v{T}, s[12:15], s21 offen offset:{N*64}")
    stamp()
    if opts.get("stamp"):
        e(f"s_mov_b32 s10, {WS_USED + 2*1024*128 + 4096}")
        e("s_lshl_b32 s20, s2, 2")
        e("s_add_u32 s20, s20, s16")
        e("s_lshl_b32 s20, s20, 7")
        e(f"s_add_u32 s20, s20, {WS_USED + 1024*128}")
        e(f"v_mov_b32 v{T+1}, 0")
        for i in range(28):
            e(f"v_mov_b32 v{T}, s{72+i}")
            e(f"buffer_store_dword v{T}, v{T+1}, s[8:11], s20 offen offset:{i*4}")
            e("s_nop 1")
    L = p.L
    if DEPTH != 4:
        return L
    rs = [(marks[i], marks[i + 1]) for i in range(1, 7)]
    out = L[:rs[0][0]] + fold(L, rs, "L_k2", 40) + L[rs[-1][1]:]
    return out


def kernel_desc(name, vgpr, accum, sgpr):
    return [
        f".amdhsa_kernel {name}",
        f"  .amdhsa_next_free_vgpr {vgpr}",
        f"  .amdhsa_next_free_sgpr {sgpr}",
        f"  .amdhsa_accum_offset {accum}",
        "  .amdhsa_group_segment_fixed_size 0",
        "  .amdhsa_kernarg_size 64",
        "  .amdhsa_user_sgpr_count 2",
        "  .amdhsa_user_sgpr_kernarg_segment_ptr 1",
        "  .amdhsa_system_sgpr_workgroup_id_x 1",
        ".end_amdhsa_kernel",
    ]


def main(path, opts):
    out = []
    out.append(f"; @launch kernel=gqa_attn_kernel grid=(256,1,1) block=(256,1,1) lds={LDS_BYTES}")
    if not opts.get("k1only"):
        out.append("; @launch kernel=gqa_oproj_kernel grid=(240,1,1) block=(256,1,1) lds=131072")
    out.append('.amdgcn_target "amdgcn-amd-amdhsa--gfx950"')
    out.append(".text")
    out += [".globl gqa_attn_kernel", ".p2align 8", ".type gqa_attn_kernel,@function", "gqa_attn_kernel:"]
    out += k1_text(opts)
    out += ["L_k1_done:", "s_endpgm"]
    out += [".globl gqa_oproj_kernel", ".p2align 8", ".type gqa_oproj_kernel,@function", "gqa_oproj_kernel:"]
    out += k2_text(opts)
    out += ["L_k2_done:", "s_endpgm", "L_text_end:"]
    out += ['.section .rodata,"a"', ".p2align 6"]
    out += kernel_desc("gqa_attn_kernel", 512, 256, 102)
    out += [".p2align 6"]
    out += kernel_desc("gqa_oproj_kernel", 512, 256, 102)
    open(path, "w").write("\n".join(out) + "\n")


if __name__ == "__main__":
    opts = {}
    for a in sys.argv[2:]:
        k, _, v = a.partition("=")
        opts[k] = int(v) if v else 1
    main(sys.argv[1], opts)
```

```python
import sys, struct
from collections import deque

NSLOT = 10
SLOT = 16384
LDS_BYTES = NSLOT * SLOT
OF_BYTES = 240 * 128 * 1024
WF_OFF = OF_BYTES
WF_BYTES = 32 * 128 * 1024
WS_USED = OF_BYTES + WF_BYTES
SCALE = 1.4426950408889634 * (128 ** -0.5)


def f32bits(x):
    return struct.unpack("<I", struct.pack("<f", x))[0]


class Prog:
    def __init__(self):
        self.L = []
        self.lds = []
        self.lds_done = 0
        self.vm = []
        self.vm_done = 0

    def e(self, s):
        self.L.append(s)

    def lds_op(self, s, tag=None):
        self.L.append(s)
        self.lds.append(tag)

    def vm_op(self, s, tag=None):
        self.L.append(s)
        self.vm.append(tag)

    def _need(self, q, done, tags):
        idx = -1
        for t in tags:
            for i in range(len(q) - 1, -1, -1):
                if q[i] == t:
                    idx = max(idx, i)
                    break
            else:
                raise RuntimeError(f"tag {t} never issued")
        return idx + 1

    def wait_lds(self, tags):
        need = self._need(self.lds, self.lds_done, tags)
        if need <= self.lds_done:
            return False
        n = min(len(self.lds) - need, 15)
        self.L.append(f"s_waitcnt lgkmcnt({n})")
        self.lds_done = len(self.lds) - n
        return True

    def wait_vm(self, tags):
        need = self._need(self.vm, self.vm_done, tags)
        if need <= self.vm_done:
            return False
        n = len(self.vm) - need
        n = min(n, 63)
        self.L.append(f"s_waitcnt vmcnt({n})")
        self.vm_done = len(self.vm) - n
        return True

    def wait_lds_all(self):
        self.L.append("s_waitcnt lgkmcnt(0)")
        self.lds_done = len(self.lds)

    def wait_vm_all(self):
        self.L.append("s_waitcnt vmcnt(0)")
        self.vm_done = len(self.vm)


V_O = 0
V_S = 128
V_P = 160
V_C = 176
V_KA = 192
V_VA = 196
V_DK = 204
V_DV = 208
V_L = 210
V_LN16 = 214
V_WA = 215
V_XA = 219
V_DW = 223
V_DX = 224
V_T = 226
V_DWO = 250
V_WOA = 251
A_QA = 0
A_QB = 64
A_ACC1 = 128
A_KF = 128
A_VF = 160

S_X, S_W, S_K, S_V, S_WS, S_WO = 4, 8, 12, 16, 20, 24
S_WAVE, S_W4K, S_PROD = 28, 29, 30
S_WOFF, S_XOFF, S_KOFF, S_VOFF = 31, 32, 33, 34
S_CONS = 35
S_T0, S_T1, S_T2, S_T3 = 36, 37, 38, 39
S_LOOP, S_HEAD = 40, 41
S_SCALE = 42
S_SCALE2 = 58
S_OOFF = 44
S_KB, S_VB, S_WB, S_XB0, S_XB1 = 48, 49, 50, 51, 52
S_BIG = 53
S_B, S_HP = 54, 55
S_WOOFF, S_WOST = 43, 56


def vr(b, n=4):
    return f"v[{b}:{b+n-1}]"


def ar(b, n=4):
    return f"a[{b}:{b+n-1}]"


def mfma(d, a, b, c):
    return f"v_mfma_f32_16x16x32_bf16 {d}, {a}, {b}, {c}"


class K1:
    def __init__(self, opts):
        self.p = Prog()
        self.o = opts
        self.fill_idx = 0
        self.nstamp = 0
        self.pending = deque()

    @staticmethod
    def slot_desc(n):
        if n < 32:
            ch, r = divmod(n, 4)
            return [("W", 2 * ch), ("X", (ch, 0)), ("X", (ch, 1)), ("W", 2 * ch + 1)][r]
        if n == 32:
            return ("WO", 0)
        n -= 33
        return ("K", n // 2) if n % 2 == 0 else ("V", n // 2)

    def adv(self, s):
        return [f"s_add_u32 s{s}, s{s}, {SLOT}",
                f"s_cmp_eq_u32 s{s}, {LDS_BYTES}",
                f"s_cselect_b32 s{s}, 0, s{s}"]

    def fill_instrs(self):
        n = self.fill_idx
        self.fill_idx += 1
        typ, par = self.slot_desc(n)
        out = [(f"s_add_u32 m0, s{S_PROD}, s{S_W4K}", "s")]
        nt = " nt" if self.o.get("nt", True) else ""
        if typ == "W":
            for p in range(4):
                out.append((f"s_add_u32 s{S_T0}, s{S_WOFF}, {p * 31744}", "s"))
                out.append((f"buffer_load_dwordx4 v{V_DW}, s[{S_W}:{S_W+3}], s{S_T0} offen offset:{p*1024}{self.pol('wpol')} lds", ("vm", n)))
            out.append((f"s_add_u32 s{S_WOFF}, s{S_WOFF}, {32 * 8192}", "s"))
        elif typ == "X":
            ch, half = par
            for p in range(4):
                out.append((f"s_add_u32 s{S_T0}, s{S_XOFF}, {half * 32768 + p * 7168}", "s"))
                out.append((f"buffer_load_dwordx4 v{V_DX + (p & 1)}, s[{S_X}:{S_X+3}], s{S_T0} offen offset:{p*1024}{self.pol('xpol')} lds", ("vm", n)))
            if half == 1:
                out.append((f"s_add_u32 s{S_XOFF}, s{S_XOFF}, 128", "s"))
        elif typ == "WO":
            for p in range(4):
                out.append((f"s_add_u32 s{S_T0}, s{S_WOOFF}, {p * 1024}", "s"))
                out.append((f"buffer_load_dwordx4 v{V_DWO}, s[{S_WO}:{S_WO+3}], s{S_T0} offen offset:{p*1024} lds", ("vm", n)))
        elif typ == "K":
            out.append(("s_nop 0", "s"))
            for p in range(4):
                out.append((f"buffer_load_dwordx4 v{V_DK + p}, s[{S_K}:{S_K+3}], s{S_KOFF} offen offset:{p*1024}{nt} lds", ("vm", n)))
            out.append((f"s_add_u32 s{S_KOFF}, s{S_KOFF}, {SLOT}", "s"))
        else:
            out.append(("s_nop 0", "s"))
            for p in range(4):
                out.append((f"buffer_load_dwordx4 v{V_DV + (p & 1)}, s[{S_V}:{S_V+3}], s{S_VOFF} offen offset:{p*1024}{nt} lds", ("vm", n)))
            out.append((f"s_add_u32 s{S_VOFF}, s{S_VOFF}, {SLOT}", "s"))
        for a in self.adv(S_PROD):
            out.append((a, "s"))
        return out

    def emit_item(self, it):
        text, kind = it
        if isinstance(kind, tuple) and kind[0] == "vm":
            self.p.vm_op(text, ("slot", kind[1]))
        elif isinstance(kind, tuple) and kind[0] == "lds":
            self.p.lds_op(text, kind[1])
        else:
            self.p.e(text)

    def open_slot(self, base_sgpr, addr_regs):
        salu = [f"s_sub_u32 s{S_T1}, s{S_CONS}, s{base_sgpr}",
                f"s_mov_b32 s{base_sgpr}, s{S_CONS}"] + self.adv(S_CONS)
        valu = [f"v_add_u32 v{r}, s{S_T1}, v{r}" for r in addr_regs]
        return salu, valu

    def stamp(self, force=False):
        if not self.o.get("stamp"):
            return
        if self.o.get("stampq") and not force:
            return
        i = self.nstamp
        self.nstamp += 1
        assert i < 14
        p = self.p
        p.e("s_memtime s[68:69]")
        p.e("s_memrealtime s[70:71]")
        p.wait_lds_all()
        p.e(f"s_mov_b32 s{72+i}, s68")
        p.e(f"s_mov_b32 s{86+i}, s70")

    def stamp_out(self):
        if not self.o.get("stamp"):
            return
        p = self.p
        if self.o.get("dbg"):
            p.e("s_load_dwordx2 s[64:65], s[0:1], 48")
            p.e("s_waitcnt lgkmcnt(0)")
            p.e("s_and_b32 s65, s65, 0xffff")
            p.e("s_mov_b32 s66, 256")
            p.e("s_mov_b32 s67, 0x20000")
            p.e(f"s_cmp_eq_u32 s2, {self.o.get('dbg')}")
            p.e("s_cbranch_scc0 L_k1_done")
            p.e(f"s_cmp_eq_u32 s{S_WAVE}, 0")
            p.e("s_cbranch_scc0 L_k1_done")
            p.e(f"v_mov_b32 v{V_T+1}, 0")
            for i in range(12):
                p.e(f"v_mov_b32 v{V_T}, s{86+i}")
                p.e(f"buffer_store_dword v{V_T}, v{V_T+1}, s[64:67], 0 offen offset:{i*4}")
                p.e("s_nop 1")
            return
        p.e(f"s_mov_b32 s{S_WS+2}, {WS_USED + 1024*128 + 4096}")
        p.e(f"s_lshl_b32 s{S_T0}, s2, 2")
        p.e(f"s_add_u32 s{S_T0}, s{S_T0}, s{S_WAVE}")
        p.e(f"s_lshl_b32 s{S_T0}, s{S_T0}, 7")
        p.e(f"s_add_u32 s{S_T0}, s{S_T0}, {WS_USED}")
        p.e(f"v_mov_b32 v{V_T+1}, 0")
        for i in range(28):
            p.e(f"v_mov_b32 v{V_T}, s{72+i}")
            p.e(f"buffer_store_dword v{V_T}, v{V_T+1}, s[{S_WS}:{S_WS+3}], s{S_T0} offen offset:{i*4}")
            p.e("s_nop 1")

    def prologue(self):
        p = self.p
        e = p.e
        e("s_cmp_ge_u32 s2, 256")
        e("s_cbranch_scc1 L_k1_done")
        e("s_load_dwordx8 s[64:71], s[0:1], 0")
        e("s_load_dwordx2 s[100:101], s[0:1], 32")
        e("s_load_dwordx2 s[56:57], s[0:1], 56")
        e(f"v_and_b32 v{V_T}, 63, v0")
        e(f"v_lshrrev_b32 v{V_T+1}, 6, v0")
        e("s_nop 0")
        e(f"v_readfirstlane_b32 s{S_WAVE}, v{V_T+1}")
        L, G, I16, R4, C4, Q = V_T, V_T + 1, V_T + 2, V_T + 3, V_T + 4, V_T + 5
        T0, T1, T2 = V_T + 6, V_T + 7, V_T + 8
        e(f"v_lshrrev_b32 v{G}, 4, v{L}")
        e(f"v_and_b32 v{I16}, 15, v{L}")
        e(f"v_lshrrev_b32 v{R4}, 2, v{I16}")
        e(f"v_and_b32 v{C4}, 3, v{I16}")
        e(f"v_lshlrev_b32 v{V_LN16}, 4, v{L}")
        if self.o.get("cpf", 1):
            e("s_getpc_b64 s[60:61]")
            e("L_pc:")
            e("s_sub_u32 s60, s60, L_pc-gqa_attn_kernel")
            e("s_subb_u32 s61, s61, 0")
            e("s_and_b32 s61, s61, 0xffff")
            e("s_mov_b32 s62, L_text_end-gqa_attn_kernel")
            e("s_mov_b32 s63, 0x20000")
            e(f"v_lshlrev_b32 v{T0}, 7, v{L}")
            e(f"s_lshl_b32 s{S_T0}, s{S_WAVE}, 13")
            for i in range(self.o.get("cpfn", 3)):
                p.vm_op(f"buffer_load_dword v{V_T+12+i}, v{T0}, s[60:63], s{S_T0} offen", "cpf")
                e(f"s_add_u32 s{S_T0}, s{S_T0}, 32768")
        e(f"s_and_b32 s{S_T0}, s2, 7")
        e(f"s_lshl_b32 s{S_T0}, s{S_T0}, 1")
        e(f"s_lshr_b32 s{S_T1}, s2, 3")
        e(f"s_and_b32 s{S_T1}, s{S_T1}, 1")
        e(f"s_add_u32 s{S_B}, s{S_T0}, s{S_T1}")
        e(f"s_lshr_b32 s{S_HP}, s2, 4")
        e(f"s_lshl_b32 s{S_W4K}, s{S_WAVE}, 12")
        for ks in range(4):
            e(f"v_add_u32 v{T0}, {4*ks}, v{G}")
            e(f"v_xor_b32 v{T0}, v{T0}, v{I16}")
            e(f"v_lshlrev_b32 v{T0}, 4, v{T0}")
            e(f"v_lshl_add_u32 v{V_KA+ks}, v{I16}, 8, v{T0}")
        e(f"v_lshl_add_u32 v{T1}, v{G}, 2, v{R4}")
        e(f"v_and_b32 v{T2}, 7, v{T1}")
        for dt in range(8):
            e(f"v_xor_b32 v{T0}, {dt}, v{T2}")
            e(f"v_lshlrev_b32 v{T0}, 5, v{T0}")
            e(f"v_lshl_add_u32 v{T0}, v{T1}, 8, v{T0}")
            e(f"v_lshl_add_u32 v{V_VA+dt}, v{C4}, 3, v{T0}")
        e(f"v_lshl_add_u32 v{T1}, v{G}, 3, v{R4}")
        for D in range(4):
            e(f"v_xor_b32 v{T0}, {D}, v{R4}")
            e(f"v_lshlrev_b32 v{T0}, 6, v{T0}")
            e(f"v_lshl_add_u32 v{T0}, v{T1}, 8, v{T0}")
            e(f"v_lshl_add_u32 v{V_WA+D}, v{C4}, 4, v{T0}")
        e(f"v_lshrrev_b32 v{T1}, 1, v{I16}")
        for half in range(2):
            for ks2 in range(2):
                e(f"v_add_u32 v{T0}, {4*ks2}, v{G}")
                e(f"v_xor_b32 v{T0}, v{T0}, v{T1}")
                e(f"v_lshlrev_b32 v{T0}, 4, v{T0}")
                e(f"v_lshl_add_u32 v{T0}, v{I16}, 7, v{T0}")
                e(f"v_add_u32 v{V_XA+half*2+ks2}, s{S_W4K}, v{T0}")
        for pp in range(4):
            e(f"v_add_u32 v{T0}, {4*pp}, v{G}")
            e(f"v_xor_b32 v{T0}, v{T0}, v{I16}")
            e(f"v_lshlrev_b32 v{T0}, 4, v{T0}")
            e(f"v_lshl_add_u32 v{V_DK+pp}, v{G}, 8, v{T0}")
        for pp in range(2):
            e(f"v_add_u32 v{T0}, {4*pp}, v{G}")
            e(f"v_lshlrev_b32 v{T0}, 1, v{T0}")
            e(f"v_xor_b32 v{T0}, v{T0}, v{I16}")
            e(f"v_lshlrev_b32 v{T0}, 4, v{T0}")
            e(f"v_lshl_add_u32 v{V_DV+pp}, v{G}, 8, v{T0}")
        e(f"v_lshlrev_b32 v{T0}, 2, v{G}")
        e(f"v_xor_b32 v{T0}, v{T0}, v{I16}")
        e(f"v_lshlrev_b32 v{T0}, 4, v{T0}")
        e(f"v_lshl_add_u32 v{V_DW}, v{G}, 13, v{T0}")
        e(f"v_lshrrev_b32 v{T1}, 3, v{L}")
        e(f"v_and_b32 v{T2}, 7, v{L}")
        for pp in range(2):
            e(f"v_add_u32 v{T0}, {4*pp}, v{G}")
            e(f"v_xor_b32 v{T0}, v{T0}, v{T2}")
            e(f"v_lshlrev_b32 v{T0}, 4, v{T0}")
            e(f"v_lshl_add_u32 v{V_DX+pp}, v{T1}, 10, v{T0}")
        e("s_waitcnt lgkmcnt(0)")
        e(f"s_mul_i32 s{S_T0}, s{S_B}, 245760")
        e(f"s_add_u32 s{S_X}, s64, s{S_T0}")
        e(f"s_addc_u32 s{S_X+1}, s65, 0")
        e(f"s_and_b32 s{S_X+1}, s{S_X+1}, 0xffff")
        e(f"s_mov_b32 s{S_X+2}, 245760")
        e(f"s_mov_b32 s{S_X+3}, 0x20000")
        e(f"s_lshl_b32 s{S_T0}, s{S_HP}, 9")
        e(f"s_add_u32 s{S_W}, s70, s{S_T0}")
        e(f"s_addc_u32 s{S_W+1}, s71, 0")
        e(f"s_and_b32 s{S_W+1}, s{S_W+1}, 0xffff")
        e(f"s_sub_u32 s{S_W+2}, 4194304, s{S_T0}")
        e(f"s_mov_b32 s{S_W+3}, 0x20000")
        e(f"s_lshl_b32 s{S_T0}, s{S_B}, 22")
        e(f"s_lshl_b32 s{S_T1}, s{S_HP}, 18")
        e(f"s_add_u32 s{S_T0}, s{S_T0}, s{S_T1}")
        e(f"s_add_u32 s{S_K}, s66, s{S_T0}")
        e(f"s_addc_u32 s{S_K+1}, s67, 0")
        e(f"s_and_b32 s{S_K+1}, s{S_K+1}, 0xffff")
        e(f"s_mov_b32 s{S_K+2}, 262144")
        e(f"s_mov_b32 s{S_K+3}, 0x20000")
        e(f"s_add_u32 s{S_V}, s68, s{S_T0}")
        e(f"s_addc_u32 s{S_V+1}, s69, 0")
        e(f"s_and_b32 s{S_V+1}, s{S_V+1}, 0xffff")
        e(f"s_mov_b32 s{S_V+2}, 262144")
        e(f"s_mov_b32 s{S_V+3}, 0x20000")
        e(f"s_mov_b32 s{S_WS}, s56")
        e(f"s_and_b32 s{S_WS+1}, s57, 0xffff")
        e(f"s_mov_b32 s{S_WS+2}, {WS_USED}")
        e(f"s_mov_b32 s{S_WS+3}, 0x20000")
        e(f"s_mov_b32 s{S_WO}, s100")
        e(f"s_and_b32 s{S_WO+1}, s101, 0xffff")
        e(f"s_mov_b32 s{S_WO+2}, 4194304")
        e(f"s_mov_b32 s{S_WO+3}, 0x20000")
        e(f"s_and_b32 s{S_T0}, s{S_WAVE}, 1")
        e(f"s_lshl_b32 s{S_T0}, s{S_T0}, 17")
        e(f"s_lshr_b32 s{S_T1}, s{S_WAVE}, 1")
        e(f"s_lshl_b32 s{S_T1}, s{S_T1}, 8")
        e(f"s_add_u32 s{S_WOFF}, s{S_T0}, s{S_T1}")
        e(f"s_lshl_b32 s{S_XOFF}, s{S_WAVE}, 16")
        e(f"s_mov_b32 s{S_KOFF}, s{S_W4K}")
        e(f"s_mov_b32 s{S_VOFF}, s{S_W4K}")
        e(f"s_mov_b32 s{S_PROD}, 0")
        e(f"s_mov_b32 s{S_CONS}, 0")
        for s in (S_KB, S_VB, S_WB, S_XB0, S_XB1):
            e(f"s_mov_b32 s{s}, 0")
        e(f"s_mov_b32 s{S_SCALE}, {f32bits(SCALE):#x}")
        e(f"s_mov_b32 s{S_SCALE2}, {f32bits(SCALE):#x}")
        e(f"s_mov_b32 s{S_SCALE2+1}, {f32bits(SCALE):#x}")
        e(f"s_mul_i32 s{S_T0}, s{S_B}, 15")
        e(f"s_lshl_b32 s{S_T1}, s{S_WAVE}, 2")
        e(f"s_add_u32 s{S_T0}, s{S_T0}, s{S_T1}")
        e(f"s_lshl_b32 s{S_T0}, s{S_T0}, 17")
        e(f"s_lshl_b32 s{S_T1}, s{S_HP}, 13")
        e(f"s_add_u32 s{S_OOFF}, s{S_T0}, s{S_T1}")
        for qt in range(1, 4):
            e(f"s_add_u32 s{S_OOFF+qt}, s{S_OOFF}, {qt*131072}")
        e(f"s_cmp_eq_u32 s{S_WAVE}, 3")
        e(f"s_cselect_b32 s{S_OOFF+3}, 0x7f000000, s{S_OOFF+3}")
        e(f"v_lshrrev_b32 v{T0}, 5, v{L}")
        e(f"v_and_b32 v{T1}, 31, v{L}")
        e(f"v_lshlrev_b32 v{T1}, 4, v{T1}")
        e(f"v_lshl_add_u32 v{V_DWO}, v{T0}, 10, v{T1}")
        e(f"s_lshr_b32 s{S_T0}, s2, 1")
        e(f"s_lshl_b32 s{S_T0}, s{S_T0}, 15")
        e(f"s_and_b32 s{S_T1}, s2, 1")
        e(f"s_lshl_b32 s{S_T1}, s{S_T1}, 9")
        e(f"s_add_u32 s{S_T0}, s{S_T0}, s{S_T1}")
        e(f"s_lshl_b32 s{S_T1}, s{S_WAVE}, 13")
        e(f"s_add_u32 s{S_WOOFF}, s{S_T0}, s{S_T1}")
        e(f"v_lshl_add_u32 v{T1}, v{G}, 2, v{R4}")
        e(f"v_lshlrev_b32 v{T1}, 9, v{T1}")
        e(f"v_lshl_add_u32 v{T1}, v{C4}, 4, v{T1}")
        e(f"s_lshl_b32 s{S_T0}, s{S_WAVE}, 7")
        e(f"v_add_u32 v{V_WOA}, s{S_T0}, v{T1}")
        e(f"s_and_b32 s{S_T0}, s2, 1")
        e(f"s_lshl_b32 s{S_T0}, s{S_T0}, 4")
        e(f"s_lshl_b32 s{S_T1}, s{S_WAVE}, 2")
        e(f"s_add_u32 s{S_T0}, s{S_T0}, s{S_T1}")
        e(f"s_lshl_b32 s{S_T0}, s{S_T0}, 17")
        e(f"s_lshr_b32 s{S_T1}, s2, 1")
        e(f"s_lshl_b32 s{S_T1}, s{S_T1}, 10")
        e(f"s_add_u32 s{S_T0}, s{S_T0}, s{S_T1}")
        e(f"s_add_u32 s{S_WOST}, s{S_T0}, {WF_OFF}")

    def first_fills(self, n):
        for _ in range(n):
            for it in self.fill_instrs():
                self.emit_item(it)

    def wo_process(self):
        p = self.p
        e = p.e
        e(f"v_add_u32 v{V_WOA}, s{S_CONS}, v{V_WOA}")
        for s in self.adv(S_CONS):
            e(s)
        for j in range(4):
            for r in range(2):
                d = V_S + j * 4 + r * 2
                p.lds_op(f"ds_read_b64_tr_b16 {vr(d,2)}, v{V_WOA} offset:{(j>>1)*64 + (j&1)*8 + r*16*512}", ("wo", j))

    def wo_store(self):
        p = self.p
        p.wait_lds([("wo", 3)])
        for j in range(4):
            p.e(f"s_add_u32 s{S_T1}, s{S_WOST}, {j*131072}")
            p.vm_op(f"buffer_store_dwordx4 {vr(V_S+j*4)}, v{V_LN16}, s[{S_WS}:{S_WS+3}], s{S_T1} offen{self.stpol()}", "wost")
        p.e("s_nop 1")

    def w_read(self, kap, f, r):
        hd, dt = f >> 3, f & 7
        D, T = dt >> 1, dt & 1
        d = V_S + (f & 7) * 4 + r * 2
        return (f"ds_read_b64_tr_b16 {vr(d,2)}, v{V_WA+D} offset:{hd*8192 + r*1024 + T*8}", ("lds", ("w", kap, f)))

    def x_read(self, kap, qt):
        ks2 = kap & 1
        d = V_P + (kap & 1) * 16 + qt * 4
        return (f"ds_read_b128 {vr(d)}, v{V_XA + (qt>>1)*2 + ks2} offset:{(qt&1)*2048}", ("lds", ("x", kap, qt)))

    def free_slots(self, n):
        for _ in range(n):
            self.pending.extend(self.fill_instrs())

    def drain(self, post, vm_gaps, salu_gaps=None):
        vm_gaps = list(vm_gaps)
        if salu_gaps is None:
            for g in vm_gaps:
                while self.pending:
                    it = self.pending.popleft()
                    post[g].append(it)
                    if isinstance(it[1], tuple):
                        break
                while self.pending and not isinstance(self.pending[0][1], tuple) and not self.pending[0][0].startswith("s_add_u32 m0") \
                        and not self.pending[0][0].startswith(f"s_add_u32 s{S_T0},"):
                    post[g].append(self.pending.popleft())
            return
        slots = sorted([(g, "v") for g in vm_gaps] + [(g, "s") for g in salu_gaps])
        for g, kind in slots:
            if not self.pending:
                break
            it = self.pending[0]
            isvm = isinstance(it[1], tuple)
            if it[0] == "s_nop 0":
                self.pending.popleft()
                it = self.pending[0]
                isvm = True
            if isvm != (kind == "v"):
                continue
            post[g].append(self.pending.popleft())
            if it[0].startswith("s_cmp"):
                post[g].append(self.pending.popleft())

    def qproj_pre(self):
        p = self.p
        p.wait_vm([("slot", 2)])
        p.e("s_barrier")
        for base, regs in ((S_WB, range(V_WA, V_WA + 4)), (S_XB0, range(V_XA, V_XA + 2)), (S_XB1, range(V_XA + 2, V_XA + 4))):
            salu, valu = self.open_slot(base, regs)
            for s in salu:
                p.e(s)
            for s in valu:
                p.e(s)
        for qt in range(4):
            self.emit_item(self.x_read(0, qt))
        for f in range(7):
            for r in range(2):
                self.emit_item(self.w_read(0, f, r))

    def qproj_step(self, kap):
        p = self.p
        last = kap == 15
        post = [[] for _ in range(64)]
        valu = [[] for _ in range(64)]
        for g in range(64):
            if g % 4 in (0, 1):
                f_cons = g // 4 - 1
                F = kap * 16 + f_cons + 8
                k2, f2 = divmod(F, 16)
                if k2 <= 15 and F >= 7:
                    post[g].append(self.w_read(k2, f2, g % 4))
        if not last:
            salu, v = self.open_slot(S_WB_next(self, kap), range(V_WA, V_WA + 4))
            post[34] += [(s, "s") for s in salu]
            valu[34] += v[:2]
            valu[35] += v[2:]
        if not last:
            if kap & 1:
                for base, regs, g in ((S_XB0, range(V_XA, V_XA + 2), 38), (S_XB1, range(V_XA + 2, V_XA + 4), 39)):
                    salu, v = self.open_slot(base, regs)
                    post[g] += [(s, "s") for s in salu]
                    valu[g] += v
            for qt in range(4):
                post[42 + 4 * qt].append(self.x_read(kap + 1, qt))
        nfree = 0 if kap == 0 else (1 if kap & 1 else 3)
        self.free_slots(nfree)
        nvm = sum(1 for it in self.pending if isinstance(it[1], tuple))
        if nvm > 12:
            vg = range(3, 64, 4)
        else:
            vg = range(3, 64, 8)
        self.drain(post, vg)
        if not last:
            req = (kap + 1) // 2 * 4 + (3 if (kap + 1) & 1 else 2)
        else:
            req = None
        for g in range(64):
            f, qt = g >> 2, g & 3
            hd, dt = f >> 3, f & 7
            need = [("w", kap, f)]
            if f == 0:
                need.append(("x", kap, qt))
            p.wait_lds(need)
            accb = (dt * 4 + qt) * 4
            acc = vr(V_O + accb) if hd == 0 else ar(A_ACC1 + accb)
            p.e(mfma(acc, vr(V_S + (f & 7) * 4), vr(V_P + (kap & 1) * 16 + qt * 4), "0" if kap == 0 else acc))
            if g == 1:
                if req is not None and not self.o.get("novmq"):
                    p.wait_vm([("slot", req)])
                if not self.o.get("nobarq"):
                    p.e("s_barrier")
            for it in post[g]:
                if self.o.get("nodmaq") and isinstance(it[1], tuple) and it[1][0] == "vm":
                    self.p.vm.append(("slot", it[1][1]))
                    continue
                self.emit_item(it)
            for s in valu[g]:
                p.e(s)

    def qconvert(self):
        p = self.p
        p.wait_vm([("slot", 33)])
        p.e("s_barrier")
        self.free_slots(3)
        self.wo_process()
        salu, v = self.open_slot(S_KB, range(V_KA, V_KA + 4))
        for s in salu + v:
            p.e(s)
        T = V_T
        cnt = 0
        for hd in (1, 0):
            dst = A_QA if hd == 0 else A_QB
            for ks in range(4):
                for qt in range(4):
                    for T2 in range(2):
                        accb = ((2 * ks + T2) * 4 + qt) * 4
                        if hd == 0:
                            src = [V_O + accb + i for i in range(4)]
                        else:
                            src = [T + T2 * 4 + i for i in range(4)]
                            for i in range(4):
                                p.e(f"v_accvgpr_read_b32 v{src[i]}, a{A_ACC1+accb+i}")
                        if self.o.get("pkmul", 1):
                            for i in (0, 2):
                                p.e(f"v_pk_mul_f32 {vr(src[i],2)}, {vr(src[i],2)}, s[{S_SCALE2}:{S_SCALE2+1}]")
                        else:
                            for i in range(4):
                                p.e(f"v_mul_f32 v{src[i]}, s{S_SCALE}, v{src[i]}")
                        p.e(f"v_cvt_pk_bf16_f32 v{T+8+T2*2}, v{src[0]}, v{src[1]}")
                        p.e(f"v_cvt_pk_bf16_f32 v{T+8+T2*2+1}, v{src[2]}, v{src[3]}")
                    for i in range(4):
                        p.e(f"v_accvgpr_write_b32 a{dst + (qt*4+ks)*4 + i}, v{T+8+i}")
                    cnt += 1
                    if cnt % 2 == 0:
                        post = [[]]
                        self.drain(post, [0])
                        for it in post[0]:
                            self.emit_item(it)
                if hd == 1 and ks == 0:
                    for k in range(8):
                        self.emit_item(self.k_read(0, k >> 2, k & 3))
                    self.wo_store()
        assert not self.pending

    def k_read(self, j, kt, ks):
        d = A_KF + (kt * 4 + ks) * 4
        return (f"ds_read_b128 {ar(d)}, v{V_KA+ks} offset:{(j&1)*8192 + kt*4096}", ("lds", ("k", j, kt, ks)))

    def v_read(self, j, dt, r):
        d = A_VF + dt * 4 + r * 2
        return (f"ds_read_b64_tr_b16 {ar(d,2)}, v{V_VA+dt} offset:{(j&1)*8192 + r*4096}", ("lds", ("v", j, dt)))

    def softmax_ops(self, qt):
        regs = [V_S + (kt * 4 + qt) * 4 + i for kt in range(2) for i in range(4)]
        ex = [f"v_exp_f32 v{r}, v{r}" for r in regs]
        ad = [f"v_add_f32 v{V_L+qt}, v{V_L+qt}, v{r}" for r in regs]
        cv = [f"v_cvt_pk_bf16_f32 v{V_P+qt*4+i}, v{regs[2*i]}, v{regs[2*i+1]}" for i in range(4)]
        return ex, ad, cv

    def attn_step(self, head, j):
        p = self.p
        J = 16 * head + j
        hasqk = j < 15
        haspv = j >= 0
        post = [[] for _ in range(64)]
        valu = [[] for _ in range(64)]
        if haspv:
            for k in range(16):
                post[2 * k + 1].append(self.v_read(J, k >> 1, k & 1))
        if j < 14:
            for k in range(8):
                post[37 + 2 * k].append(self.k_read(J + 2, k >> 2, k & 3))
        if j < 14 and (j & 1) == 0:
            salu, v = self.open_slot(S_KB, range(V_KA, V_KA + 4))
            post[32] += [(s, "s") for s in salu[:3]]
            post[34] += [(s, "s") for s in salu[3:]]
            for i, s in enumerate(v):
                valu[33 + (i >> 1) * 2].append(s)
        if j < 15 and ((j + 1) & 1) == 0:
            salu, v = self.open_slot(S_VB, range(V_VA, V_VA + 8))
            post[50] += [(s, "s") for s in salu[:3]]
            post[52] += [(s, "s") for s in salu[3:]]
            for i, s in enumerate(v):
                valu[55 + (i >> 1) * 2].append(s)
        if j >= 1 or (j == 0 and head == 0):
            self.free_slots(1)
        self.drain(post, [8, 24, 40, 56], [2, 58, 60, 62])
        assert not self.pending
        def place(qt, g0):
            ex, ad, cv = self.softmax_ops(qt)
            for i in range(8):
                valu[g0 + 2 * i].append(ex[i])
                valu[g0 + 2 * i + 1].insert(0, ad[i])
            return cv
        if haspv:
            cv3 = place(3, 0)
            for i in range(4):
                valu[17 + 2 * i].append(cv3[i])
        if hasqk and j >= 0:
            cv0 = place(0, 16)
            cv1 = place(1, 32)
            cv2 = place(2, 48)
            for i in range(4):
                valu[41 + 2 * i].append(cv0[i])
                valu[53 + 2 * i].append(cv1[i])
            self.pending_cv2 = cv2
        if haspv and j >= 0:
            for i, s in enumerate(self.prev_cv2):
                valu[1 + 2 * i].append(s)
        A0 = 33
        req = None
        if j >= 0 and (j & 1) == 0:
            req = A0 + J + 2 if j < 14 else A0 + J + 1
        gaps = list(range(64))
        if not hasqk:
            pass
        for g in gaps:
            isqk = g < 32
            if isqk and not hasqk:
                mf = None
            elif (not isqk) and not haspv:
                mf = None
            elif isqk:
                qt, kt, ks = g >> 3, (g >> 2) & 1, g & 3
                if qt == 0:
                    p.wait_lds([("k", J + 1, kt, ks)])
                s = vr(V_S + (kt * 4 + qt) * 4)
                c = s if ks else ("0" if j == -1 else vr(V_C + qt * 4))
                mf = mfma(s, ar(A_KF + (kt * 4 + ks) * 4), ar(A_QA + (qt * 4 + ks) * 4), c)
            else:
                qt, dt = (g - 32) >> 3, (g - 32) & 7
                if qt == 0:
                    p.wait_lds([("v", J, dt)])
                o = vr(V_O + (dt * 4 + qt) * 4)
                mf = mfma(o, ar(A_VF + dt * 4), vr(V_P + qt * 4), "0" if j == 0 else o)
            if mf:
                p.e(mf)
            if g == 0 and j >= 0:
                if req is not None:
                    p.wait_vm([("slot", req)])
                p.e("s_barrier")
            for it in post[g]:
                self.emit_item(it)
            vl = valu[g]
            for s in vl:
                p.e(s)
            if not mf and vl:
                p.e("s_nop 0")
            if j == -1 and g == 31:
                self.first_tile()
        if hasqk:
            self.prev_cv2 = self.pending_cv2

    def first_tile(self):
        p = self.p
        p.e("s_nop 7")
        p.e("s_nop 3")
        T = V_T
        for qt in range(4):
            r = [V_S + (kt * 4 + qt) * 4 + i for kt in range(2) for i in range(4)]
            p.e(f"v_max3_f32 v{T+qt}, v{r[0]}, v{r[1]}, v{r[2]}")
            p.e(f"v_max3_f32 v{T+4+qt}, v{r[3]}, v{r[4]}, v{r[5]}")
            p.e(f"v_max3_f32 v{T+qt}, v{T+qt}, v{r[6]}, v{r[7]}")
            p.e(f"v_max_f32 v{T+qt}, v{T+qt}, v{T+4+qt}")
        for qt in range(4):
            p.e(f"v_mov_b32 v{T+4+qt}, v{T+qt}")
        p.e("s_nop 1")
        for qt in range(4):
            p.e(f"v_permlane16_swap_b32 v{T+qt}, v{T+4+qt}")
        p.e("s_nop 1")
        for qt in range(4):
            p.e(f"v_max_f32 v{T+qt}, v{T+qt}, v{T+4+qt}")
        for qt in range(4):
            p.e(f"v_mov_b32 v{T+4+qt}, v{T+qt}")
        p.e("s_nop 1")
        for qt in range(4):
            p.e(f"v_permlane32_swap_b32 v{T+qt}, v{T+4+qt}")
        p.e("s_nop 1")
        for qt in range(4):
            p.e(f"v_max_f32 v{T+qt}, v{T+qt}, v{T+4+qt}")
        p.e(f"v_max_f32 v{T+3}, s{S_BIG}, v{T+3}")
        for qt in range(4):
            for i in range(4):
                p.e(f"v_sub_f32 v{V_C+qt*4+i}, 0, v{T+qt}")
            p.e(f"v_mov_b32 v{V_L+qt}, 0")
        for qt in range(4):
            for kt in range(2):
                for i in range(4):
                    r = V_S + (kt * 4 + qt) * 4 + i
                    p.e(f"v_sub_f32 v{r}, v{r}, v{T+qt}")
        for qt in range(3):
            ex, ad, cv = self.softmax_ops(qt)
            for s in ex:
                p.e(s)
            p.e("s_nop 0")
            for s in ad:
                p.e(s)
            if qt < 2:
                for s in cv:
                    p.e(s)
            else:
                self.pending_cv2 = cv

    def head_pre(self, head):
        p = self.p
        J = 16 * head
        p.wait_vm([("slot", 33 + J)])
        p.e("s_barrier")
        self.free_slots(1)
        salu, v = self.open_slot(S_KB, range(V_KA, V_KA + 4))
        for s in salu + v:
            p.e(s)
        for k in range(8):
            self.emit_item(self.k_read(J, k >> 2, k & 3))

    def epilogue(self, head):
        p = self.p
        T = V_T
        p.e("s_nop 7")
        for qt in range(4):
            p.e(f"v_mov_b32 v{T+4+qt}, v{V_L+qt}")
        p.e("s_nop 1")
        for qt in range(4):
            p.e(f"v_permlane16_swap_b32 v{V_L+qt}, v{T+4+qt}")
        p.e("s_nop 1")
        for qt in range(4):
            p.e(f"v_add_f32 v{V_L+qt}, v{V_L+qt}, v{T+4+qt}")
        for qt in range(4):
            p.e(f"v_mov_b32 v{T+4+qt}, v{V_L+qt}")
        p.e("s_nop 1")
        for qt in range(4):
            p.e(f"v_permlane32_swap_b32 v{V_L+qt}, v{T+4+qt}")
        p.e("s_nop 1")
        for qt in range(4):
            p.e(f"v_add_f32 v{V_L+qt}, v{V_L+qt}, v{T+4+qt}")
        for qt in range(4):
            p.e(f"v_rcp_f32 v{T+qt}, v{V_L+qt}")
        p.e("s_nop 0")
        k = 0
        for qt in range(4):
            for s in range(4):
                d = T + 8 + (k & 1) * 4
                k += 1
                for T2 in range(2):
                    b = V_O + ((2 * s + T2) * 4 + qt) * 4
                    for i in range(4):
                        p.e(f"v_mul_f32 v{b+i}, v{b+i}, v{T+qt}")
                    p.e(f"v_cvt_pk_bf16_f32 v{d+T2*2}, v{b}, v{b+1}")
                    p.e(f"v_cvt_pk_bf16_f32 v{d+T2*2+1}, v{b+2}, v{b+3}")
                p.vm_op(f"buffer_store_dwordx4 {vr(d)}, v{V_LN16}, s[{S_WS}:{S_WS+3}], s{S_OOFF+qt} offen offset:{s*1024}{self.stpol()}", "ost")
        for qt in range(4):
            p.e(f"s_add_u32 s{S_OOFF+qt}, s{S_OOFF+qt}, 4096")

    def pol(self, k):
        return ["", " sc1", " sc0 sc1", " nt", " sc1 nt", " sc0 sc1 nt", " sc0"][self.o.get(k, 0)]

    def stpol(self):
        return ["", " sc1", " sc0 sc1", " nt", " sc1 nt", " sc0 sc1 nt"][self.o.get("stpol", 0)]

    def build(self):
        p = self.p
        marks = []
        if self.o.get("stamp"):
            for i in range(28):
                p.e(f"s_mov_b32 s{72+i}, 0")
        self.stamp()
        self.prologue()
        self.first_fills(self.o.get("up", 4))
        self.free_slots(NSLOT - self.o.get("up", 4))
        self.stamp()
        p.e(f"s_cmp_eq_u32 s{S_WAVE}, 3")
        p.e(f"s_mov_b32 s{S_T0}, 0xff7fffff")
        p.e(f"s_cselect_b32 s{S_BIG}, 0x7149f2ca, s{S_T0}")
        self.qproj_pre()
        self.stamp()
        for kap in range(16):
            marks.append(("qp", kap, len(p.L)))
            if self.o.get("stampq") == 1 and (kap % 2 == 0 or kap > 12):
                self.stamp(True)
            self.qproj_step(kap)
            if self.o.get("stampq") == 1 and kap == 15:
                self.stamp(True)
        marks.append(("qp", 16, len(p.L)))
        self.stamp()
        self.qconvert()
        self.stamp()
        if self.o.get("dumpq"):
            self.dump_q()
            return marks
        for head in range(2):
            marks.append(("head", head, len(p.L)))
            if head == 1:
                for i in range(64):
                    p.e(f"v_accvgpr_mov_b32 a{A_QA+i}, a{A_QB+i}")
                self.head_pre(head)
            for j in range(-1, 16):
                marks.append(("at", head, j, len(p.L)))
                if self.o.get("stampq") == 2 and head == 0 and j >= 3:
                    self.stamp(True)
                self.attn_step(head, j)
                if j in (0,):
                    self.stamp()
            marks.append(("at", head, 16, len(p.L)))
            self.stamp()
            self.epilogue(head)
            self.stamp()
        marks.append(("head", 2, len(p.L)))
        self.stamp_out()
        return marks

    def dump_q(self):
        p = self.p
        for hd in range(2):
            for qt in range(4):
                for ks in range(4):
                    b = (A_QA if hd == 0 else A_QB) + (qt * 4 + ks) * 4
                    for i in range(4):
                        p.e(f"v_accvgpr_read_b32 v{V_T+i}, a{b+i}")
                    p.vm_op(f"buffer_store_dwordx4 {vr(V_T)}, v{V_LN16}, s[{S_WS}:{S_WS+3}], s{S_OOFF+qt} offen offset:{ks*1024}", "ost")
                    p.e("s_nop 2")
            for qt in range(4):
                p.e(f"s_add_u32 s{S_OOFF+qt}, s{S_OOFF+qt}, 4096")


def S_WB_next(self, kap):
    return S_WB


def fold(lines, ranges, label, counter):
    s0, e0 = ranges[0]
    body = lines[s0:e0]
    for (s, e) in ranges[1:]:
        assert lines[s:e] == body, f"loop {label}: iteration differs"
    n = len(ranges)
    out = [f"s_mov_b32 s{counter}, {n}", f"{label}:"] + body + [
        f"s_sub_u32 s{counter}, s{counter}, 1", f"s_cmp_lg_u32 s{counter}, 0", f"s_cbranch_scc1 {label}"]
    return out


def k1_text(opts):
    k = K1(opts)
    marks = k.build()
    L = k.p.L
    if opts.get("nofold"):
        return L
    pos = {m[:-1]: m[-1] for m in marks}
    out = []
    cur = 0

    def take(upto):
        nonlocal cur
        out.extend(L[cur:upto])
        cur = upto

    def pairs(key, a, b):
        return [(pos[key(i)], pos[key(i + 2)]) for i in range(a, b, 2)]

    def longest_run(rs):
        best = (0, 1)
        i = 0
        while i < len(rs):
            j = i + 1
            while j < len(rs) and L[rs[j][0]:rs[j][1]] == L[rs[i][0]:rs[i][1]]:
                j += 1
            if j - i > best[1]:
                best = (i, j - i)
            i = j
        return rs[best[0]:best[0] + best[1]]

    rs = longest_run(pairs(lambda i: ("qp", i), 1, 15))
    take(rs[0][0])
    out.extend(fold(L, rs, "L_qp", S_LOOP))
    cur = rs[-1][1]
    if opts.get("dumpq"):
        take(len(L))
        return out
    for head in range(2):
        rs = longest_run(pairs(lambda i: ("at", head, i), 1, 15))
        take(rs[0][0])
        out.extend(fold(L, rs, f"L_at{head}", S_LOOP))
        cur = rs[-1][1]
    take(len(L))
    return out


def k2_text(opts):
    p = Prog()
    e = p.e
    DEPTH = opts.get('depth', 4)
    NK = 32
    ACC = 0
    lane, g, i16 = 128, 129, 130
    VA = 131
    T = 132
    nst = [0]
    def stamp():
        if not opts.get("stamp"):
            return
        i = nst[0]; nst[0] += 1
        e("s_memtime s[68:69]")
        e("s_memrealtime s[70:71]")
        p.wait_lds_all()
        e(f"s_mov_b32 s{72+i}, s68")
        e(f"s_mov_b32 s{86+i}, s70")
    e("s_cmp_ge_u32 s2, 240")
    e("s_cbranch_scc1 L_k2_done")
    if opts.get("stamp"):
        for i in range(28):
            e(f"s_mov_b32 s{72+i}, 0")
    stamp()
    e("s_load_dwordx2 s[4:5], s[0:1], 56")
    e("s_load_dwordx2 s[6:7], s[0:1], 40")
    e(f"v_and_b32 v{lane}, 63, v0")
    e(f"v_lshrrev_b32 v{T}, 6, v0")
    e("s_nop 0")
    e(f"v_readfirstlane_b32 s16, v{T}")
    e(f"v_lshrrev_b32 v{g}, 4, v{lane}")
    e(f"v_and_b32 v{i16}, 15, v{lane}")
    e(f"v_lshlrev_b32 v{VA}, 4, v{lane}")
    e("s_and_b32 s17, s2, 7")
    e("s_mul_i32 s17, s17, 30")
    e("s_lshr_b32 s18, s2, 3")
    e("s_add_u32 s17, s17, s18")
    e("s_lshr_b32 s18, s17, 3")
    e("s_and_b32 s19, s17, 7")
    e("s_waitcnt lgkmcnt(0)")
    e("s_mov_b32 s8, s4")
    e("s_and_b32 s9, s5, 0xffff")
    e(f"s_mov_b32 s10, {WS_USED}")
    e("s_mov_b32 s11, 0x20000")
    e("s_mov_b32 s12, s6")
    e("s_and_b32 s13, s7, 0xffff")
    e("s_mov_b32 s14, 3932160")
    e("s_mov_b32 s15, 0x20000")
    e("s_lshl_b32 s20, s16, 15")
    e("s_lshl_b32 s21, s18, 20")
    e("s_add_u32 s21, s21, s20")
    for mt in range(8):
        e(f"s_add_u32 s{24+mt}, s21, {mt*131072}")
    e("s_lshl_b32 s21, s19, 19")
    e("s_add_u32 s21, s21, s20")
    for nt in range(4):
        e(f"s_add_u32 s{32+nt}, s21, {WF_OFF + nt*131072}")

    def fr(k, i):
        st = k % DEPTH
        if st < 5:
            return ar(st * 48 + i * 4)
        return vr(136 + (st - 5) * 48 + i * 4)

    def loads(k):
        out = []
        for i in range(12):
            out.append((f"buffer_load_dwordx4 {fr(k, i)}, v{VA}, s[8:11], s{24+i} offen offset:{(k % 4)*1024}", ("f", k, i)))
        return out

    def adv():
        return [f"s_add_u32 s{24+i}, s{24+i}, 4096" for i in range(12)]

    order = [8, 0, 1, 2, 3, 4, 5, 6, 7, 9, 10, 11]
    for k in range(DEPTH):
        ld = loads(k)
        for i in order:
            p.vm_op(*ld[i])
        if k % 4 == 3:
            for s in adv():
                e(s)
    marks = []
    for k in range(NK):
        if k == 1:
            stamp()
        if k % 4 == 0:
            marks.append(len(p.L))
        kn = k + DEPTH
        ld = loads(kn) if kn < NK else None
        for m in range(32):
            nt, mt = m >> 3, m & 7
            p.wait_vm([("f", k, 8 + nt), ("f", k, mt)])
            acc = vr(ACC + (nt * 8 + mt) * 4)
            e(mfma(acc, fr(k, 8 + nt), fr(k, mt), "0" if k == 0 else acc))
            if k >= 1 and (k - 1 + DEPTH) < NK and m < 24 and m % 2 == 0:
                l2 = loads(k - 1 + DEPTH)
                p.vm_op(*l2[order[m // 2]])
            if k >= 1 and (k - 1 + DEPTH) < NK and (k - 1 + DEPTH) % 4 == 3 and m >= 24:
                a = adv()
                e(a[m - 24])
                if m == 31:
                    for s in a[8:]:
                        e(s)
    marks.append(len(p.L))
    stamp()
    e("s_nop 7")
    e("s_nop 7")
    e("s_lshl_b32 s20, s16, 13")
    e(f"v_add_u32 v{T}, s20, v{VA}")
    for dw in range(4):
        for nt in range(4):
            for h in range(2):
                a = ACC + (nt * 8 + 2 * dw + h) * 4
                off = dw * 32768 + (nt * 2 + h) * 1024
                if off < 65536:
                    p.lds_op(f"ds_write_b128 v{T}, {vr(a)} offset:{off}")
                else:
                    if dw == 2 and nt == 0 and h == 0:
                        e(f"v_add_u32 v{T+1}, 0x10000, v{T}")
                    p.lds_op(f"ds_write_b128 v{T+1}, {vr(a)} offset:{off-65536}")
    p.wait_lds_all()
    e("s_barrier")
    e("s_lshl_b32 s20, s16, 15")
    e(f"v_add_u32 v{T}, s20, v{VA}")
    for sw in range(4):
        for t in range(8):
            p.lds_op(f"ds_read_b128 {vr((sw*8+t)*4)}, v{T} offset:{sw*8192 + t*1024}", ("r", sw, t))
            if len(p.lds) - p.lds_done >= 15:
                p.wait_lds([p.lds[p.lds_done + 3]])
    p.wait_lds_all()
    for t in range(8):
        for i in range(4):
            e(f"v_add_f32 v{t*4+i}, v{t*4+i}, v{32+t*4+i}")
            e(f"v_add_f32 v{64+t*4+i}, v{64+t*4+i}, v{96+t*4+i}")
        for i in range(4):
            e(f"v_add_f32 v{t*4+i}, v{t*4+i}, v{64+t*4+i}")
    e(f"v_lshlrev_b32 v{T}, 10, v{i16}")
    e(f"v_lshl_add_u32 v{T}, v{g}, 4, v{T}")
    e("s_lshl_b32 s20, s18, 17")
    e("s_lshl_b32 s21, s16, 15")
    e("s_add_u32 s20, s20, s21")
    e("s_lshl_b32 s21, s19, 7")
    e("s_add_u32 s20, s20, s21")
    for h in range(2):
        for N in range(2):
            d = 32 + (h * 2 + N) * 4
            for T2 in range(2):
                t = (2 * N + T2) * 2 + h
                e(f"v_cvt_pk_bf16_f32 v{d+T2*2}, v{t*4}, v{t*4+1}")
                e(f"v_cvt_pk_bf16_f32 v{d+T2*2+1}, v{t*4+2}, v{t*4+3}")
            e(f"s_add_u32 s21, s20, {h*16384}")
            p.vm_op(f"buffer_store_dwordx4 {vr(d)}, v{T}, s[12:15], s21 offen offset:{N*64}")
    stamp()
    if opts.get("dbg"):
        e("s_load_dwordx2 s[64:65], s[0:1], 48")
        e("s_waitcnt lgkmcnt(0)")
        e("s_sub_u32 s64, s64, 512")
        e("s_subb_u32 s65, s65, 0")
        e("s_and_b32 s65, s65, 0xffff")
        e("s_mov_b32 s66, 256")
        e("s_mov_b32 s67, 0x20000")
        e(f"s_cmp_eq_u32 s2, {opts.get('dbg')}")
        e("s_cbranch_scc0 L_k2_done")
        e("s_cmp_eq_u32 s16, 0")
        e("s_cbranch_scc0 L_k2_done")
        e(f"v_mov_b32 v{T+1}, 0")
        for i in range(4):
            e(f"v_mov_b32 v{T}, s{86+i}")
            e(f"buffer_store_dword v{T}, v{T+1}, s[64:67], 0 offen offset:{48+i*4}")
            e("s_nop 1")
    elif opts.get("stamp"):
        e(f"s_mov_b32 s10, {WS_USED + 2*1024*128 + 4096}")
        e("s_lshl_b32 s20, s2, 2")
        e("s_add_u32 s20, s20, s16")
        e("s_lshl_b32 s20, s20, 7")
        e(f"s_add_u32 s20, s20, {WS_USED + 1024*128}")
        e(f"v_mov_b32 v{T+1}, 0")
        for i in range(28):
            e(f"v_mov_b32 v{T}, s{72+i}")
            e(f"buffer_store_dword v{T}, v{T+1}, s[8:11], s20 offen offset:{i*4}")
            e("s_nop 1")
    L = p.L
    if DEPTH != 4:
        return L
    rs = [(marks[i], marks[i + 1]) for i in range(1, 7)]
    out = L[:rs[0][0]] + fold(L, rs, "L_k2", 40) + L[rs[-1][1]:]
    return out


def kernel_desc(name, vgpr, accum, sgpr):
    return [
        f".amdhsa_kernel {name}",
        f"  .amdhsa_next_free_vgpr {vgpr}",
        f"  .amdhsa_next_free_sgpr {sgpr}",
        f"  .amdhsa_accum_offset {accum}",
        "  .amdhsa_group_segment_fixed_size 0",
        "  .amdhsa_kernarg_size 64",
        "  .amdhsa_user_sgpr_count 2",
        "  .amdhsa_user_sgpr_kernarg_segment_ptr 1",
        "  .amdhsa_system_sgpr_workgroup_id_x 1",
        ".end_amdhsa_kernel",
    ]


def main(path, opts):
    out = []
    out.append(f"; @launch kernel=gqa_attn_kernel grid=(256,1,1) block=(256,1,1) lds={LDS_BYTES}")
    if not opts.get("k1only"):
        out.append("; @launch kernel=gqa_oproj_kernel grid=(240,1,1) block=(256,1,1) lds=131072")
    out.append('.amdgcn_target "amdgcn-amd-amdhsa--gfx950"')
    out.append(".text")
    out += [".globl gqa_attn_kernel", ".p2align 8", ".type gqa_attn_kernel,@function", "gqa_attn_kernel:"]
    out += k1_text(opts)
    out += ["L_k1_done:", "s_endpgm"]
    out += [".globl gqa_oproj_kernel", ".p2align 8", ".type gqa_oproj_kernel,@function", "gqa_oproj_kernel:"]
    out += k2_text(opts)
    out += ["L_k2_done:", "s_endpgm", "L_text_end:"]
    out += ['.section .rodata,"a"', ".p2align 6"]
    out += kernel_desc("gqa_attn_kernel", 512, 256, 102)
    out += [".p2align 6"]
    out += kernel_desc("gqa_oproj_kernel", 512, 256, 102)
    open(path, "w").write("\n".join(out) + "\n")


if __name__ == "__main__":
    opts = {}
    for a in sys.argv[2:]:
        k, _, v = a.partition("=")
        opts[k] = int(v) if v else 1
    main(sys.argv[1], opts)
```

```python
import sys, struct
from collections import deque

NSLOT = 10
SLOT = 16384
LDS_BYTES = NSLOT * SLOT
OF_BYTES = 240 * 128 * 1024
WF_OFF = OF_BYTES
WF_BYTES = 32 * 128 * 1024
WS_USED = OF_BYTES + WF_BYTES
SCALE = 1.4426950408889634 * (128 ** -0.5)


def f32bits(x):
    return struct.unpack("<I", struct.pack("<f", x))[0]


class Prog:
    def __init__(self):
        self.L = []
        self.lds = []
        self.lds_done = 0
        self.vm = []
        self.vm_done = 0

    def e(self, s):
        self.L.append(s)

    def lds_op(self, s, tag=None):
        self.L.append(s)
        self.lds.append(tag)

    def vm_op(self, s, tag=None):
        self.L.append(s)
        self.vm.append(tag)

    def _need(self, q, done, tags):
        idx = -1
        for t in tags:
            for i in range(len(q) - 1, -1, -1):
                if q[i] == t:
                    idx = max(idx, i)
                    break
            else:
                raise RuntimeError(f"tag {t} never issued")
        return idx + 1

    def wait_lds(self, tags):
        need = self._need(self.lds, self.lds_done, tags)
        if need <= self.lds_done:
            return False
        n = min(len(self.lds) - need, 15)
        self.L.append(f"s_waitcnt lgkmcnt({n})")
        self.lds_done = len(self.lds) - n
        return True

    def wait_vm(self, tags):
        need = self._need(self.vm, self.vm_done, tags)
        if need <= self.vm_done:
            return False
        n = len(self.vm) - need
        n = min(n, 63)
        self.L.append(f"s_waitcnt vmcnt({n})")
        self.vm_done = len(self.vm) - n
        return True

    def wait_lds_all(self):
        self.L.append("s_waitcnt lgkmcnt(0)")
        self.lds_done = len(self.lds)

    def wait_vm_all(self):
        self.L.append("s_waitcnt vmcnt(0)")
        self.vm_done = len(self.vm)


V_O = 0
V_S = 128
V_P = 160
V_C = 176
V_KA = 192
V_VA = 196
V_DK = 204
V_DV = 208
V_L = 210
V_LN16 = 214
V_WA = 215
V_XA = 219
V_DW = 223
V_DX = 224
V_T = 226
V_DWO = 250
V_WOA = 251
A_QA = 0
A_QB = 64
A_ACC1 = 128
A_KF = 128
A_VF = 160

S_X, S_W, S_K, S_V, S_WS, S_WO = 4, 8, 12, 16, 20, 24
S_WAVE, S_W4K, S_PROD = 28, 29, 30
S_WOFF, S_XOFF, S_KOFF, S_VOFF = 31, 32, 33, 34
S_CONS = 35
S_T0, S_T1, S_T2, S_T3 = 36, 37, 38, 39
S_LOOP, S_HEAD = 40, 41
S_SCALE = 42
S_SCALE2 = 58
S_OOFF = 44
S_KB, S_VB, S_WB, S_XB0, S_XB1 = 48, 49, 50, 51, 52
S_BIG = 53
S_B, S_HP = 54, 55
S_WOOFF, S_WOST = 43, 56


def vr(b, n=4):
    return f"v[{b}:{b+n-1}]"


def ar(b, n=4):
    return f"a[{b}:{b+n-1}]"


def mfma(d, a, b, c):
    return f"v_mfma_f32_16x16x32_bf16 {d}, {a}, {b}, {c}"


class K1:
    def __init__(self, opts):
        self.p = Prog()
        self.o = opts
        self.fill_idx = 0
        self.nstamp = 0
        self.pending = deque()

    @staticmethod
    def slot_desc(n):
        if n < 32:
            ch, r = divmod(n, 4)
            return [("W", 2 * ch), ("X", (ch, 0)), ("X", (ch, 1)), ("W", 2 * ch + 1)][r]
        if n == 32:
            return ("WO", 0)
        n -= 33
        return ("K", n // 2) if n % 2 == 0 else ("V", n // 2)

    def adv(self, s):
        return [f"s_add_u32 s{s}, s{s}, {SLOT}",
                f"s_cmp_eq_u32 s{s}, {LDS_BYTES}",
                f"s_cselect_b32 s{s}, 0, s{s}"]

    def fill_instrs(self):
        n = self.fill_idx
        self.fill_idx += 1
        typ, par = self.slot_desc(n)
        out = [(f"s_add_u32 m0, s{S_PROD}, s{S_W4K}", "s")]
        nt = " nt" if self.o.get("nt", True) else ""
        if typ == "W":
            for p in range(4):
                out.append((f"s_add_u32 s{S_T0}, s{S_WOFF}, {p * 31744}", "s"))
                out.append((f"buffer_load_dwordx4 v{V_DW}, s[{S_W}:{S_W+3}], s{S_T0} offen offset:{p*1024}{self.pol('wpol')} lds", ("vm", n)))
            out.append((f"s_add_u32 s{S_WOFF}, s{S_WOFF}, {32 * 8192}", "s"))
        elif typ == "X":
            ch, half = par
            for p in range(4):
                out.append((f"s_add_u32 s{S_T0}, s{S_XOFF}, {half * 32768 + p * 7168}", "s"))
                out.append((f"buffer_load_dwordx4 v{V_DX + (p & 1)}, s[{S_X}:{S_X+3}], s{S_T0} offen offset:{p*1024}{self.pol('xpol')} lds", ("vm", n)))
            if half == 1:
                out.append((f"s_add_u32 s{S_XOFF}, s{S_XOFF}, 128", "s"))
        elif typ == "WO":
            for p in range(4):
                out.append((f"s_add_u32 s{S_T0}, s{S_WOOFF}, {p * 1024}", "s"))
                out.append((f"buffer_load_dwordx4 v{V_DWO}, s[{S_WO}:{S_WO+3}], s{S_T0} offen offset:{p*1024} lds", ("vm", n)))
        elif typ == "K":
            out.append(("s_nop 0", "s"))
            for p in range(4):
                out.append((f"buffer_load_dwordx4 v{V_DK + p}, s[{S_K}:{S_K+3}], s{S_KOFF} offen offset:{p*1024}{nt} lds", ("vm", n)))
            out.append((f"s_add_u32 s{S_KOFF}, s{S_KOFF}, {SLOT}", "s"))
        else:
            out.append(("s_nop 0", "s"))
            for p in range(4):
                out.append((f"buffer_load_dwordx4 v{V_DV + (p & 1)}, s[{S_V}:{S_V+3}], s{S_VOFF} offen offset:{p*1024}{nt} lds", ("vm", n)))
            out.append((f"s_add_u32 s{S_VOFF}, s{S_VOFF}, {SLOT}", "s"))
        for a in self.adv(S_PROD):
            out.append((a, "s"))
        return out

    def emit_item(self, it):
        text, kind = it
        if isinstance(kind, tuple) and kind[0] == "vm":
            self.p.vm_op(text, ("slot", kind[1]))
        elif isinstance(kind, tuple) and kind[0] == "lds":
            self.p.lds_op(text, kind[1])
        else:
            self.p.e(text)

    def open_slot(self, base_sgpr, addr_regs):
        salu = [f"s_sub_u32 s{S_T1}, s{S_CONS}, s{base_sgpr}",
                f"s_mov_b32 s{base_sgpr}, s{S_CONS}"] + self.adv(S_CONS)
        valu = [f"v_add_u32 v{r}, s{S_T1}, v{r}" for r in addr_regs]
        return salu, valu

    def stamp(self, force=False):
        if not self.o.get("stamp"):
            return
        if self.o.get("stampq") and not force:
            return
        i = self.nstamp
        self.nstamp += 1
        assert i < 14
        p = self.p
        p.e("s_memtime s[68:69]")
        p.e("s_memrealtime s[70:71]")
        p.wait_lds_all()
        p.e(f"s_mov_b32 s{72+i}, s68")
        p.e(f"s_mov_b32 s{86+i}, s70")

    def stamp_out(self):
        if not self.o.get("stamp"):
            return
        p = self.p
        p.e(f"s_mov_b32 s{S_WS+2}, {WS_USED + 1024*128 + 4096}")
        p.e(f"s_lshl_b32 s{S_T0}, s2, 2")
        p.e(f"s_add_u32 s{S_T0}, s{S_T0}, s{S_WAVE}")
        p.e(f"s_lshl_b32 s{S_T0}, s{S_T0}, 7")
        p.e(f"s_add_u32 s{S_T0}, s{S_T0}, {WS_USED}")
        p.e(f"v_mov_b32 v{V_T+1}, 0")
        for i in range(28):
            p.e(f"v_mov_b32 v{V_T}, s{72+i}")
            p.e(f"buffer_store_dword v{V_T}, v{V_T+1}, s[{S_WS}:{S_WS+3}], s{S_T0} offen offset:{i*4}")
            p.e("s_nop 1")

    def prologue(self):
        p = self.p
        e = p.e
        e("s_cmp_ge_u32 s2, 256")
        e("s_cbranch_scc1 L_k1_done")
        e("s_load_dwordx8 s[64:71], s[0:1], 0")
        e("s_load_dwordx2 s[100:101], s[0:1], 32")
        e("s_load_dwordx2 s[56:57], s[0:1], 56")
        e(f"v_and_b32 v{V_T}, 63, v0")
        e(f"v_lshrrev_b32 v{V_T+1}, 6, v0")
        e("s_nop 0")
        e(f"v_readfirstlane_b32 s{S_WAVE}, v{V_T+1}")
        L, G, I16, R4, C4, Q = V_T, V_T + 1, V_T + 2, V_T + 3, V_T + 4, V_T + 5
        T0, T1, T2 = V_T + 6, V_T + 7, V_T + 8
        e(f"v_lshrrev_b32 v{G}, 4, v{L}")
        e(f"v_and_b32 v{I16}, 15, v{L}")
        e(f"v_lshrrev_b32 v{R4}, 2, v{I16}")
        e(f"v_and_b32 v{C4}, 3, v{I16}")
        e(f"v_lshlrev_b32 v{V_LN16}, 4, v{L}")
        if self.o.get("cpf", 1):
            e("s_getpc_b64 s[60:61]")
            e("L_pc:")
            e("s_sub_u32 s60, s60, L_pc-gqa_attn_kernel")
            e("s_subb_u32 s61, s61, 0")
            e("s_and_b32 s61, s61, 0xffff")
            e("s_mov_b32 s62, L_text_end-gqa_attn_kernel")
            e("s_mov_b32 s63, 0x20000")
            e(f"v_lshlrev_b32 v{T0}, 7, v{L}")
            e(f"s_lshl_b32 s{S_T0}, s{S_WAVE}, 13")
            for i in range(self.o.get("cpfn", 3)):
                p.vm_op(f"buffer_load_dword v{V_T+12+i}, v{T0}, s[60:63], s{S_T0} offen", "cpf")
                e(f"s_add_u32 s{S_T0}, s{S_T0}, 32768")
        e(f"s_and_b32 s{S_T0}, s2, 7")
        e(f"s_lshl_b32 s{S_T0}, s{S_T0}, 1")
        e(f"s_lshr_b32 s{S_T1}, s2, 3")
        e(f"s_and_b32 s{S_T1}, s{S_T1}, 1")
        e(f"s_add_u32 s{S_B}, s{S_T0}, s{S_T1}")
        e(f"s_lshr_b32 s{S_HP}, s2, 4")
        e(f"s_lshl_b32 s{S_W4K}, s{S_WAVE}, 12")
        for ks in range(4):
            e(f"v_add_u32 v{T0}, {4*ks}, v{G}")
            e(f"v_xor_b32 v{T0}, v{T0}, v{I16}")
            e(f"v_lshlrev_b32 v{T0}, 4, v{T0}")
            e(f"v_lshl_add_u32 v{V_KA+ks}, v{I16}, 8, v{T0}")
        e(f"v_lshl_add_u32 v{T1}, v{G}, 2, v{R4}")
        e(f"v_and_b32 v{T2}, 7, v{T1}")
        for dt in range(8):
            e(f"v_xor_b32 v{T0}, {dt}, v{T2}")
            e(f"v_lshlrev_b32 v{T0}, 5, v{T0}")
            e(f"v_lshl_add_u32 v{T0}, v{T1}, 8, v{T0}")
            e(f"v_lshl_add_u32 v{V_VA+dt}, v{C4}, 3, v{T0}")
        e(f"v_lshl_add_u32 v{T1}, v{G}, 3, v{R4}")
        for D in range(4):
            e(f"v_xor_b32 v{T0}, {D}, v{R4}")
            e(f"v_lshlrev_b32 v{T0}, 6, v{T0}")
            e(f"v_lshl_add_u32 v{T0}, v{T1}, 8, v{T0}")
            e(f"v_lshl_add_u32 v{V_WA+D}, v{C4}, 4, v{T0}")
        e(f"v_lshrrev_b32 v{T1}, 1, v{I16}")
        for half in range(2):
            for ks2 in range(2):
                e(f"v_add_u32 v{T0}, {4*ks2}, v{G}")
                e(f"v_xor_b32 v{T0}, v{T0}, v{T1}")
                e(f"v_lshlrev_b32 v{T0}, 4, v{T0}")
                e(f"v_lshl_add_u32 v{T0}, v{I16}, 7, v{T0}")
                e(f"v_add_u32 v{V_XA+half*2+ks2}, s{S_W4K}, v{T0}")
        for pp in range(4):
            e(f"v_add_u32 v{T0}, {4*pp}, v{G}")
            e(f"v_xor_b32 v{T0}, v{T0}, v{I16}")
            e(f"v_lshlrev_b32 v{T0}, 4, v{T0}")
            e(f"v_lshl_add_u32 v{V_DK+pp}, v{G}, 8, v{T0}")
        for pp in range(2):
            e(f"v_add_u32 v{T0}, {4*pp}, v{G}")
            e(f"v_lshlrev_b32 v{T0}, 1, v{T0}")
            e(f"v_xor_b32 v{T0}, v{T0}, v{I16}")
            e(f"v_lshlrev_b32 v{T0}, 4, v{T0}")
            e(f"v_lshl_add_u32 v{V_DV+pp}, v{G}, 8, v{T0}")
        e(f"v_lshlrev_b32 v{T0}, 2, v{G}")
        e(f"v_xor_b32 v{T0}, v{T0}, v{I16}")
        e(f"v_lshlrev_b32 v{T0}, 4, v{T0}")
        e(f"v_lshl_add_u32 v{V_DW}, v{G}, 13, v{T0}")
        e(f"v_lshrrev_b32 v{T1}, 3, v{L}")
        e(f"v_and_b32 v{T2}, 7, v{L}")
        for pp in range(2):
            e(f"v_add_u32 v{T0}, {4*pp}, v{G}")
            e(f"v_xor_b32 v{T0}, v{T0}, v{T2}")
            e(f"v_lshlrev_b32 v{T0}, 4, v{T0}")
            e(f"v_lshl_add_u32 v{V_DX+pp}, v{T1}, 10, v{T0}")
        e("s_waitcnt lgkmcnt(0)")
        e(f"s_mul_i32 s{S_T0}, s{S_B}, 245760")
        e(f"s_add_u32 s{S_X}, s64, s{S_T0}")
        e(f"s_addc_u32 s{S_X+1}, s65, 0")
        e(f"s_and_b32 s{S_X+1}, s{S_X+1}, 0xffff")
        e(f"s_mov_b32 s{S_X+2}, 245760")
        e(f"s_mov_b32 s{S_X+3}, 0x20000")
        e(f"s_lshl_b32 s{S_T0}, s{S_HP}, 9")
        e(f"s_add_u32 s{S_W}, s70, s{S_T0}")
        e(f"s_addc_u32 s{S_W+1}, s71, 0")
        e(f"s_and_b32 s{S_W+1}, s{S_W+1}, 0xffff")
        e(f"s_sub_u32 s{S_W+2}, 4194304, s{S_T0}")
        e(f"s_mov_b32 s{S_W+3}, 0x20000")
        e(f"s_lshl_b32 s{S_T0}, s{S_B}, 22")
        e(f"s_lshl_b32 s{S_T1}, s{S_HP}, 18")
        e(f"s_add_u32 s{S_T0}, s{S_T0}, s{S_T1}")
        e(f"s_add_u32 s{S_K}, s66, s{S_T0}")
        e(f"s_addc_u32 s{S_K+1}, s67, 0")
        e(f"s_and_b32 s{S_K+1}, s{S_K+1}, 0xffff")
        e(f"s_mov_b32 s{S_K+2}, 262144")
        e(f"s_mov_b32 s{S_K+3}, 0x20000")
        e(f"s_add_u32 s{S_V}, s68, s{S_T0}")
        e(f"s_addc_u32 s{S_V+1}, s69, 0")
        e(f"s_and_b32 s{S_V+1}, s{S_V+1}, 0xffff")
        e(f"s_mov_b32 s{S_V+2}, 262144")
        e(f"s_mov_b32 s{S_V+3}, 0x20000")
        e(f"s_mov_b32 s{S_WS}, s56")
        e(f"s_and_b32 s{S_WS+1}, s57, 0xffff")
        e(f"s_mov_b32 s{S_WS+2}, {WS_USED}")
        e(f"s_mov_b32 s{S_WS+3}, 0x20000")
        e(f"s_mov_b32 s{S_WO}, s100")
        e(f"s_and_b32 s{S_WO+1}, s101, 0xffff")
        e(f"s_mov_b32 s{S_WO+2}, 4194304")
        e(f"s_mov_b32 s{S_WO+3}, 0x20000")
        e(f"s_and_b32 s{S_T0}, s{S_WAVE}, 1")
        e(f"s_lshl_b32 s{S_T0}, s{S_T0}, 17")
        e(f"s_lshr_b32 s{S_T1}, s{S_WAVE}, 1")
        e(f"s_lshl_b32 s{S_T1}, s{S_T1}, 8")
        e(f"s_add_u32 s{S_WOFF}, s{S_T0}, s{S_T1}")
        e(f"s_lshl_b32 s{S_XOFF}, s{S_WAVE}, 16")
        e(f"s_mov_b32 s{S_KOFF}, s{S_W4K}")
        e(f"s_mov_b32 s{S_VOFF}, s{S_W4K}")
        e(f"s_mov_b32 s{S_PROD}, 0")
        e(f"s_mov_b32 s{S_CONS}, 0")
        for s in (S_KB, S_VB, S_WB, S_XB0, S_XB1):
            e(f"s_mov_b32 s{s}, 0")
        e(f"s_mov_b32 s{S_SCALE}, {f32bits(SCALE):#x}")
        e(f"s_mov_b32 s{S_SCALE2}, {f32bits(SCALE):#x}")
        e(f"s_mov_b32 s{S_SCALE2+1}, {f32bits(SCALE):#x}")
        e(f"s_mul_i32 s{S_T0}, s{S_B}, 15")
        e(f"s_lshl_b32 s{S_T1}, s{S_WAVE}, 2")
        e(f"s_add_u32 s{S_T0}, s{S_T0}, s{S_T1}")
        e(f"s_lshl_b32 s{S_T0}, s{S_T0}, 17")
        e(f"s_lshl_b32 s{S_T1}, s{S_HP}, 13")
        e(f"s_add_u32 s{S_OOFF}, s{S_T0}, s{S_T1}")
        for qt in range(1, 4):
            e(f"s_add_u32 s{S_OOFF+qt}, s{S_OOFF}, {qt*131072}")
        e(f"s_cmp_eq_u32 s{S_WAVE}, 3")
        e(f"s_cselect_b32 s{S_OOFF+3}, 0x7f000000, s{S_OOFF+3}")
        e(f"v_lshrrev_b32 v{T0}, 5, v{L}")
        e(f"v_and_b32 v{T1}, 31, v{L}")
        e(f"v_lshlrev_b32 v{T1}, 4, v{T1}")
        e(f"v_lshl_add_u32 v{V_DWO}, v{T0}, 10, v{T1}")
        e(f"s_lshr_b32 s{S_T0}, s2, 1")
        e(f"s_lshl_b32 s{S_T0}, s{S_T0}, 15")
        e(f"s_and_b32 s{S_T1}, s2, 1")
        e(f"s_lshl_b32 s{S_T1}, s{S_T1}, 9")
        e(f"s_add_u32 s{S_T0}, s{S_T0}, s{S_T1}")
        e(f"s_lshl_b32 s{S_T1}, s{S_WAVE}, 13")
        e(f"s_add_u32 s{S_WOOFF}, s{S_T0}, s{S_T1}")
        e(f"v_lshl_add_u32 v{T1}, v{G}, 2, v{R4}")
        e(f"v_lshlrev_b32 v{T1}, 9, v{T1}")
        e(f"v_lshl_add_u32 v{T1}, v{C4}, 4, v{T1}")
        e(f"s_lshl_b32 s{S_T0}, s{S_WAVE}, 7")
        e(f"v_add_u32 v{V_WOA}, s{S_T0}, v{T1}")
        e(f"s_and_b32 s{S_T0}, s2, 1")
        e(f"s_lshl_b32 s{S_T0}, s{S_T0}, 4")
        e(f"s_lshl_b32 s{S_T1}, s{S_WAVE}, 2")
        e(f"s_add_u32 s{S_T0}, s{S_T0}, s{S_T1}")
        e(f"s_lshl_b32 s{S_T0}, s{S_T0}, 17")
        e(f"s_lshr_b32 s{S_T1}, s2, 1")
        e(f"s_lshl_b32 s{S_T1}, s{S_T1}, 10")
        e(f"s_add_u32 s{S_T0}, s{S_T0}, s{S_T1}")
        e(f"s_add_u32 s{S_WOST}, s{S_T0}, {WF_OFF}")

    def first_fills(self, n):
        for _ in range(n):
            for it in self.fill_instrs():
                self.emit_item(it)

    def wo_process(self):
        p = self.p
        e = p.e
        e(f"v_add_u32 v{V_WOA}, s{S_CONS}, v{V_WOA}")
        for s in self.adv(S_CONS):
            e(s)
        for j in range(4):
            for r in range(2):
                d = V_S + j * 4 + r * 2
                p.lds_op(f"ds_read_b64_tr_b16 {vr(d,2)}, v{V_WOA} offset:{(j>>1)*64 + (j&1)*8 + r*16*512}", ("wo", j))

    def wo_store(self):
        p = self.p
        p.wait_lds([("wo", 3)])
        for j in range(4):
            p.e(f"s_add_u32 s{S_T1}, s{S_WOST}, {j*131072}")
            p.vm_op(f"buffer_store_dwordx4 {vr(V_S+j*4)}, v{V_LN16}, s[{S_WS}:{S_WS+3}], s{S_T1} offen{self.stpol()}", "wost")
        p.e("s_nop 1")

    def w_read(self, kap, f, r):
        hd, dt = f >> 3, f & 7
        D, T = dt >> 1, dt & 1
        d = V_S + (f & 7) * 4 + r * 2
        return (f"ds_read_b64_tr_b16 {vr(d,2)}, v{V_WA+D} offset:{hd*8192 + r*1024 + T*8}", ("lds", ("w", kap, f)))

    def x_read(self, kap, qt):
        ks2 = kap & 1
        d = V_P + (kap & 1) * 16 + qt * 4
        return (f"ds_read_b128 {vr(d)}, v{V_XA + (qt>>1)*2 + ks2} offset:{(qt&1)*2048}", ("lds", ("x", kap, qt)))

    def free_slots(self, n):
        for _ in range(n):
            self.pending.extend(self.fill_instrs())

    def drain(self, post, vm_gaps, salu_gaps=None):
        vm_gaps = list(vm_gaps)
        if salu_gaps is None:
            for g in vm_gaps:
                while self.pending:
                    it = self.pending.popleft()
                    post[g].append(it)
                    if isinstance(it[1], tuple):
                        break
                while self.pending and not isinstance(self.pending[0][1], tuple) and not self.pending[0][0].startswith("s_add_u32 m0") \
                        and not self.pending[0][0].startswith(f"s_add_u32 s{S_T0},"):
                    post[g].append(self.pending.popleft())
            return
        slots = sorted([(g, "v") for g in vm_gaps] + [(g, "s") for g in salu_gaps])
        for g, kind in slots:
            if not self.pending:
                break
            it = self.pending[0]
            isvm = isinstance(it[1], tuple)
            if it[0] == "s_nop 0":
                self.pending.popleft()
                it = self.pending[0]
                isvm = True
            if isvm != (kind == "v"):
                continue
            post[g].append(self.pending.popleft())
            if it[0].startswith("s_cmp"):
                post[g].append(self.pending.popleft())

    def qproj_pre(self):
        p = self.p
        p.wait_vm([("slot", 2)])
        p.e("s_barrier")
        for base, regs in ((S_WB, range(V_WA, V_WA + 4)), (S_XB0, range(V_XA, V_XA + 2)), (S_XB1, range(V_XA + 2, V_XA + 4))):
            salu, valu = self.open_slot(base, regs)
            for s in salu:
                p.e(s)
            for s in valu:
                p.e(s)
        for qt in range(4):
            self.emit_item(self.x_read(0, qt))
        for f in range(7):
            for r in range(2):
                self.emit_item(self.w_read(0, f, r))

    def qproj_step(self, kap):
        p = self.p
        last = kap == 15
        post = [[] for _ in range(64)]
        valu = [[] for _ in range(64)]
        for g in range(64):
            if g % 4 in (0, 1):
                f_cons = g // 4 - 1
                F = kap * 16 + f_cons + 8
                k2, f2 = divmod(F, 16)
                if k2 <= 15 and F >= 7:
                    post[g].append(self.w_read(k2, f2, g % 4))
        if not last:
            salu, v = self.open_slot(S_WB_next(self, kap), range(V_WA, V_WA + 4))
            post[34] += [(s, "s") for s in salu]
            valu[34] += v[:2]
            valu[35] += v[2:]
        if not last:
            if kap & 1:
                for base, regs, g in ((S_XB0, range(V_XA, V_XA + 2), 38), (S_XB1, range(V_XA + 2, V_XA + 4), 39)):
                    salu, v = self.open_slot(base, regs)
                    post[g] += [(s, "s") for s in salu]
                    valu[g] += v
            for qt in range(4):
                post[42 + 4 * qt].append(self.x_read(kap + 1, qt))
        nfree = 0 if kap == 0 else (1 if kap & 1 else 3)
        self.free_slots(nfree)
        nvm = sum(1 for it in self.pending if isinstance(it[1], tuple))
        if nvm > 12:
            vg = range(3, 64, 4)
        else:
            vg = range(3, 64, 8)
        self.drain(post, vg)
        if not last:
            req = (kap + 1) // 2 * 4 + (3 if (kap + 1) & 1 else 2)
        else:
            req = None
        for g in range(64):
            f, qt = g >> 2, g & 3
            hd, dt = f >> 3, f & 7
            need = [("w", kap, f)]
            if f == 0:
                need.append(("x", kap, qt))
            p.wait_lds(need)
            accb = (dt * 4 + qt) * 4
            acc = vr(V_O + accb) if hd == 0 else ar(A_ACC1 + accb)
            p.e(mfma(acc, vr(V_S + (f & 7) * 4), vr(V_P + (kap & 1) * 16 + qt * 4), "0" if kap == 0 else acc))
            if g == 1:
                if req is not None and not self.o.get("novmq"):
                    p.wait_vm([("slot", req)])
                if not self.o.get("nobarq"):
                    p.e("s_barrier")
            for it in post[g]:
                if self.o.get("nodmaq") and isinstance(it[1], tuple) and it[1][0] == "vm":
                    self.p.vm.append(("slot", it[1][1]))
                    continue
                self.emit_item(it)
            for s in valu[g]:
                p.e(s)

    def qconvert(self):
        p = self.p
        p.wait_vm([("slot", 33)])
        p.e("s_barrier")
        self.free_slots(3)
        self.wo_process()
        salu, v = self.open_slot(S_KB, range(V_KA, V_KA + 4))
        for s in salu + v:
            p.e(s)
        T = V_T
        cnt = 0
        for hd in (1, 0):
            dst = A_QA if hd == 0 else A_QB
            for ks in range(4):
                for qt in range(4):
                    for T2 in range(2):
                        accb = ((2 * ks + T2) * 4 + qt) * 4
                        if hd == 0:
                            src = [V_O + accb + i for i in range(4)]
                        else:
                            src = [T + T2 * 4 + i for i in range(4)]
                            for i in range(4):
                                p.e(f"v_accvgpr_read_b32 v{src[i]}, a{A_ACC1+accb+i}")
                        if self.o.get("pkmul", 1):
                            for i in (0, 2):
                                p.e(f"v_pk_mul_f32 {vr(src[i],2)}, {vr(src[i],2)}, s[{S_SCALE2}:{S_SCALE2+1}]")
                        else:
                            for i in range(4):
                                p.e(f"v_mul_f32 v{src[i]}, s{S_SCALE}, v{src[i]}")
                        p.e(f"v_cvt_pk_bf16_f32 v{T+8+T2*2}, v{src[0]}, v{src[1]}")
                        p.e(f"v_cvt_pk_bf16_f32 v{T+8+T2*2+1}, v{src[2]}, v{src[3]}")
                    for i in range(4):
                        p.e(f"v_accvgpr_write_b32 a{dst + (qt*4+ks)*4 + i}, v{T+8+i}")
                    cnt += 1
                    if cnt % 2 == 0:
                        post = [[]]
                        self.drain(post, [0])
                        for it in post[0]:
                            self.emit_item(it)
                if hd == 1 and ks == 0:
                    for k in range(8):
                        self.emit_item(self.k_read(0, k >> 2, k & 3))
                    self.wo_store()
        assert not self.pending

    def k_read(self, j, kt, ks):
        d = A_KF + (kt * 4 + ks) * 4
        return (f"ds_read_b128 {ar(d)}, v{V_KA+ks} offset:{(j&1)*8192 + kt*4096}", ("lds", ("k", j, kt, ks)))

    def v_read(self, j, dt, r):
        d = A_VF + dt * 4 + r * 2
        return (f"ds_read_b64_tr_b16 {ar(d,2)}, v{V_VA+dt} offset:{(j&1)*8192 + r*4096}", ("lds", ("v", j, dt)))

    def softmax_ops(self, qt):
        regs = [V_S + (kt * 4 + qt) * 4 + i for kt in range(2) for i in range(4)]
        ex = [f"v_exp_f32 v{r}, v{r}" for r in regs]
        ad = [f"v_add_f32 v{V_L+qt}, v{V_L+qt}, v{r}" for r in regs]
        cv = [f"v_cvt_pk_bf16_f32 v{V_P+qt*4+i}, v{regs[2*i]}, v{regs[2*i+1]}" for i in range(4)]
        return ex, ad, cv

    def attn_step(self, head, j):
        p = self.p
        J = 16 * head + j
        hasqk = j < 15
        haspv = j >= 0
        post = [[] for _ in range(64)]
        valu = [[] for _ in range(64)]
        if haspv:
            for k in range(16):
                post[2 * k + 1].append(self.v_read(J, k >> 1, k & 1))
        if j < 14:
            for k in range(8):
                post[37 + 2 * k].append(self.k_read(J + 2, k >> 2, k & 3))
        if j < 14 and (j & 1) == 0:
            salu, v = self.open_slot(S_KB, range(V_KA, V_KA + 4))
            post[32] += [(s, "s") for s in salu[:3]]
            post[34] += [(s, "s") for s in salu[3:]]
            for i, s in enumerate(v):
                valu[33 + (i >> 1) * 2].append(s)
        if j < 15 and ((j + 1) & 1) == 0:
            salu, v = self.open_slot(S_VB, range(V_VA, V_VA + 8))
            post[50] += [(s, "s") for s in salu[:3]]
            post[52] += [(s, "s") for s in salu[3:]]
            for i, s in enumerate(v):
                valu[55 + (i >> 1) * 2].append(s)
        if j >= 1 or (j == 0 and head == 0):
            self.free_slots(1)
        self.drain(post, [8, 24, 40, 56], [2, 58, 60, 62])
        assert not self.pending
        def place(qt, g0):
            ex, ad, cv = self.softmax_ops(qt)
            for i in range(8):
                valu[g0 + 2 * i].append(ex[i])
                valu[g0 + 2 * i + 1].insert(0, ad[i])
            return cv
        if haspv:
            cv3 = place(3, 0)
            for i in range(4):
                valu[17 + 2 * i].append(cv3[i])
        if hasqk and j >= 0:
            cv0 = place(0, 16)
            cv1 = place(1, 32)
            cv2 = place(2, 48)
            for i in range(4):
                valu[41 + 2 * i].append(cv0[i])
                valu[53 + 2 * i].append(cv1[i])
            self.pending_cv2 = cv2
        if haspv and j >= 0:
            for i, s in enumerate(self.prev_cv2):
                valu[1 + 2 * i].append(s)
        A0 = 33
        req = None
        if j >= 0 and (j & 1) == 0:
            req = A0 + J + 2 if j < 14 else A0 + J + 1
        gaps = list(range(64))
        if not hasqk:
            pass
        for g in gaps:
            isqk = g < 32
            if isqk and not hasqk:
                mf = None
            elif (not isqk) and not haspv:
                mf = None
            elif isqk:
                qt, kt, ks = g >> 3, (g >> 2) & 1, g & 3
                if qt == 0:
                    p.wait_lds([("k", J + 1, kt, ks)])
                s = vr(V_S + (kt * 4 + qt) * 4)
                c = s if ks else ("0" if j == -1 else vr(V_C + qt * 4))
                mf = mfma(s, ar(A_KF + (kt * 4 + ks) * 4), ar(A_QA + (qt * 4 + ks) * 4), c)
            else:
                qt, dt = (g - 32) >> 3, (g - 32) & 7
                if qt == 0:
                    p.wait_lds([("v", J, dt)])
                o = vr(V_O + (dt * 4 + qt) * 4)
                mf = mfma(o, ar(A_VF + dt * 4), vr(V_P + qt * 4), "0" if j == 0 else o)
            if mf:
                p.e(mf)
            if g == 0 and j >= 0:
                if req is not None:
                    p.wait_vm([("slot", req)])
                p.e("s_barrier")
            for it in post[g]:
                self.emit_item(it)
            vl = valu[g]
            for s in vl:
                p.e(s)
            if not mf and vl:
                p.e("s_nop 0")
            if j == -1 and g == 31:
                self.first_tile()
        if hasqk:
            self.prev_cv2 = self.pending_cv2

    def first_tile(self):
        p = self.p
        p.e("s_nop 7")
        p.e("s_nop 3")
        T = V_T
        for qt in range(4):
            r = [V_S + (kt * 4 + qt) * 4 + i for kt in range(2) for i in range(4)]
            p.e(f"v_max3_f32 v{T+qt}, v{r[0]}, v{r[1]}, v{r[2]}")
            p.e(f"v_max3_f32 v{T+4+qt}, v{r[3]}, v{r[4]}, v{r[5]}")
            p.e(f"v_max3_f32 v{T+qt}, v{T+qt}, v{r[6]}, v{r[7]}")
            p.e(f"v_max_f32 v{T+qt}, v{T+qt}, v{T+4+qt}")
        for qt in range(4):
            p.e(f"v_mov_b32 v{T+4+qt}, v{T+qt}")
        p.e("s_nop 1")
        for qt in range(4):
            p.e(f"v_permlane16_swap_b32 v{T+qt}, v{T+4+qt}")
        p.e("s_nop 1")
        for qt in range(4):
            p.e(f"v_max_f32 v{T+qt}, v{T+qt}, v{T+4+qt}")
        for qt in range(4):
            p.e(f"v_mov_b32 v{T+4+qt}, v{T+qt}")
        p.e("s_nop 1")
        for qt in range(4):
            p.e(f"v_permlane32_swap_b32 v{T+qt}, v{T+4+qt}")
        p.e("s_nop 1")
        for qt in range(4):
            p.e(f"v_max_f32 v{T+qt}, v{T+qt}, v{T+4+qt}")
        p.e(f"v_max_f32 v{T+3}, s{S_BIG}, v{T+3}")
        for qt in range(4):
            for i in range(4):
                p.e(f"v_sub_f32 v{V_C+qt*4+i}, 0, v{T+qt}")
            p.e(f"v_mov_b32 v{V_L+qt}, 0")
        for qt in range(4):
            for kt in range(2):
                for i in range(4):
                    r = V_S + (kt * 4 + qt) * 4 + i
                    p.e(f"v_sub_f32 v{r}, v{r}, v{T+qt}")
        for qt in range(3):
            ex, ad, cv = self.softmax_ops(qt)
            for s in ex:
                p.e(s)
            p.e("s_nop 0")
            for s in ad:
                p.e(s)
            if qt < 2:
                for s in cv:
                    p.e(s)
            else:
                self.pending_cv2 = cv

    def head_pre(self, head):
        p = self.p
        J = 16 * head
        p.wait_vm([("slot", 33 + J)])
        p.e("s_barrier")
        self.free_slots(1)
        salu, v = self.open_slot(S_KB, range(V_KA, V_KA + 4))
        for s in salu + v:
            p.e(s)
        for k in range(8):
            self.emit_item(self.k_read(J, k >> 2, k & 3))

    def epilogue(self, head):
        p = self.p
        T = V_T
        p.e("s_nop 7")
        for qt in range(4):
            p.e(f"v_mov_b32 v{T+4+qt}, v{V_L+qt}")
        p.e("s_nop 1")
        for qt in range(4):
            p.e(f"v_permlane16_swap_b32 v{V_L+qt}, v{T+4+qt}")
        p.e("s_nop 1")
        for qt in range(4):
            p.e(f"v_add_f32 v{V_L+qt}, v{V_L+qt}, v{T+4+qt}")
        for qt in range(4):
            p.e(f"v_mov_b32 v{T+4+qt}, v{V_L+qt}")
        p.e("s_nop 1")
        for qt in range(4):
            p.e(f"v_permlane32_swap_b32 v{V_L+qt}, v{T+4+qt}")
        p.e("s_nop 1")
        for qt in range(4):
            p.e(f"v_add_f32 v{V_L+qt}, v{V_L+qt}, v{T+4+qt}")
        for qt in range(4):
            p.e(f"v_rcp_f32 v{T+qt}, v{V_L+qt}")
        p.e("s_nop 0")
        k = 0
        for qt in range(4):
            for s in range(4):
                d = T + 8 + (k & 1) * 4
                k += 1
                for T2 in range(2):
                    b = V_O + ((2 * s + T2) * 4 + qt) * 4
                    for i in range(4):
                        p.e(f"v_mul_f32 v{b+i}, v{b+i}, v{T+qt}")
                    p.e(f"v_cvt_pk_bf16_f32 v{d+T2*2}, v{b}, v{b+1}")
                    p.e(f"v_cvt_pk_bf16_f32 v{d+T2*2+1}, v{b+2}, v{b+3}")
                p.vm_op(f"buffer_store_dwordx4 {vr(d)}, v{V_LN16}, s[{S_WS}:{S_WS+3}], s{S_OOFF+qt} offen offset:{s*1024}{self.stpol()}", "ost")
        for qt in range(4):
            p.e(f"s_add_u32 s{S_OOFF+qt}, s{S_OOFF+qt}, 4096")

    def pol(self, k):
        return ["", " sc1", " sc0 sc1", " nt", " sc1 nt", " sc0 sc1 nt", " sc0"][self.o.get(k, 0)]

    def stpol(self):
        return ["", " sc1", " sc0 sc1", " nt", " sc1 nt", " sc0 sc1 nt"][self.o.get("stpol", 0)]

    def build(self):
        p = self.p
        marks = []
        if self.o.get("stamp"):
            for i in range(28):
                p.e(f"s_mov_b32 s{72+i}, 0")
        self.stamp()
        self.prologue()
        self.first_fills(self.o.get("up", 4))
        self.free_slots(NSLOT - self.o.get("up", 4))
        self.stamp()
        p.e(f"s_cmp_eq_u32 s{S_WAVE}, 3")
        p.e(f"s_mov_b32 s{S_T0}, 0xff7fffff")
        p.e(f"s_cselect_b32 s{S_BIG}, 0x7149f2ca, s{S_T0}")
        self.qproj_pre()
        self.stamp()
        for kap in range(16):
            marks.append(("qp", kap, len(p.L)))
            if self.o.get("stampq") == 1 and (kap % 2 == 0 or kap > 12):
                self.stamp(True)
            self.qproj_step(kap)
            if self.o.get("stampq") == 1 and kap == 15:
                self.stamp(True)
        marks.append(("qp", 16, len(p.L)))
        self.stamp()
        self.qconvert()
        self.stamp()
        if self.o.get("dumpq"):
            self.dump_q()
            return marks
        for head in range(2):
            marks.append(("head", head, len(p.L)))
            if head == 1:
                for i in range(64):
                    p.e(f"v_accvgpr_mov_b32 a{A_QA+i}, a{A_QB+i}")
                self.head_pre(head)
            for j in range(-1, 16):
                marks.append(("at", head, j, len(p.L)))
                if self.o.get("stampq") == 2 and head == 0 and j >= 3:
                    self.stamp(True)
                self.attn_step(head, j)
                if j in (0,):
                    self.stamp()
            marks.append(("at", head, 16, len(p.L)))
            self.stamp()
            self.epilogue(head)
            self.stamp()
        marks.append(("head", 2, len(p.L)))
        self.stamp_out()
        return marks

    def dump_q(self):
        p = self.p
        for hd in range(2):
            for qt in range(4):
                for ks in range(4):
                    b = (A_QA if hd == 0 else A_QB) + (qt * 4 + ks) * 4
                    for i in range(4):
                        p.e(f"v_accvgpr_read_b32 v{V_T+i}, a{b+i}")
                    p.vm_op(f"buffer_store_dwordx4 {vr(V_T)}, v{V_LN16}, s[{S_WS}:{S_WS+3}], s{S_OOFF+qt} offen offset:{ks*1024}", "ost")
                    p.e("s_nop 2")
            for qt in range(4):
                p.e(f"s_add_u32 s{S_OOFF+qt}, s{S_OOFF+qt}, 4096")


def S_WB_next(self, kap):
    return S_WB


def fold(lines, ranges, label, counter):
    s0, e0 = ranges[0]
    body = lines[s0:e0]
    for (s, e) in ranges[1:]:
        assert lines[s:e] == body, f"loop {label}: iteration differs"
    n = len(ranges)
    out = [f"s_mov_b32 s{counter}, {n}", f"{label}:"] + body + [
        f"s_sub_u32 s{counter}, s{counter}, 1", f"s_cmp_lg_u32 s{counter}, 0", f"s_cbranch_scc1 {label}"]
    return out


def k1_text(opts):
    k = K1(opts)
    marks = k.build()
    L = k.p.L
    if opts.get("nofold"):
        return L
    pos = {m[:-1]: m[-1] for m in marks}
    out = []
    cur = 0

    def take(upto):
        nonlocal cur
        out.extend(L[cur:upto])
        cur = upto

    def pairs(key, a, b):
        return [(pos[key(i)], pos[key(i + 2)]) for i in range(a, b, 2)]

    def longest_run(rs):
        best = (0, 1)
        i = 0
        while i < len(rs):
            j = i + 1
            while j < len(rs) and L[rs[j][0]:rs[j][1]] == L[rs[i][0]:rs[i][1]]:
                j += 1
            if j - i > best[1]:
                best = (i, j - i)
            i = j
        return rs[best[0]:best[0] + best[1]]

    rs = longest_run(pairs(lambda i: ("qp", i), 1, 15))
    take(rs[0][0])
    out.extend(fold(L, rs, "L_qp", S_LOOP))
    cur = rs[-1][1]
    if opts.get("dumpq"):
        take(len(L))
        return out
    for head in range(2):
        rs = longest_run(pairs(lambda i: ("at", head, i), 1, 15))
        take(rs[0][0])
        out.extend(fold(L, rs, f"L_at{head}", S_LOOP))
        cur = rs[-1][1]
    take(len(L))
    return out


def k2_text(opts):
    p = Prog()
    e = p.e
    DEPTH = opts.get('depth', 4)
    NK = 32
    ACC = 0
    lane, g, i16 = 128, 129, 130
    VA = 131
    T = 132
    nst = [0]
    def stamp():
        if not opts.get("stamp"):
            return
        i = nst[0]; nst[0] += 1
        e("s_memtime s[68:69]")
        e("s_memrealtime s[70:71]")
        p.wait_lds_all()
        e(f"s_mov_b32 s{72+i}, s68")
        e(f"s_mov_b32 s{86+i}, s70")
    e("s_cmp_ge_u32 s2, 240")
    e("s_cbranch_scc1 L_k2_done")
    if opts.get("stamp"):
        for i in range(28):
            e(f"s_mov_b32 s{72+i}, 0")
    stamp()
    e("s_load_dwordx2 s[4:5], s[0:1], 56")
    e("s_load_dwordx2 s[6:7], s[0:1], 40")
    e(f"v_and_b32 v{lane}, 63, v0")
    e(f"v_lshrrev_b32 v{T}, 6, v0")
    e("s_nop 0")
    e(f"v_readfirstlane_b32 s16, v{T}")
    e(f"v_lshrrev_b32 v{g}, 4, v{lane}")
    e(f"v_and_b32 v{i16}, 15, v{lane}")
    e(f"v_lshlrev_b32 v{VA}, 4, v{lane}")
    e("s_and_b32 s17, s2, 7")
    e("s_mul_i32 s17, s17, 30")
    e("s_lshr_b32 s18, s2, 3")
    e("s_add_u32 s17, s17, s18")
    e("s_lshr_b32 s18, s17, 3")
    e("s_and_b32 s19, s17, 7")
    e("s_waitcnt lgkmcnt(0)")
    e("s_mov_b32 s8, s4")
    e("s_and_b32 s9, s5, 0xffff")
    e(f"s_mov_b32 s10, {WS_USED}")
    e("s_mov_b32 s11, 0x20000")
    e("s_mov_b32 s12, s6")
    e("s_and_b32 s13, s7, 0xffff")
    e("s_mov_b32 s14, 3932160")
    e("s_mov_b32 s15, 0x20000")
    e("s_lshl_b32 s20, s16, 15")
    e("s_lshl_b32 s21, s18, 20")
    e("s_add_u32 s21, s21, s20")
    for mt in range(8):
        e(f"s_add_u32 s{24+mt}, s21, {mt*131072}")
    e("s_lshl_b32 s21, s19, 19")
    e("s_add_u32 s21, s21, s20")
    for nt in range(4):
        e(f"s_add_u32 s{32+nt}, s21, {WF_OFF + nt*131072}")

    def fr(k, i):
        st = k % DEPTH
        if st < 5:
            return ar(st * 48 + i * 4)
        return vr(136 + (st - 5) * 48 + i * 4)

    def loads(k):
        out = []
        for i in range(12):
            out.append((f"buffer_load_dwordx4 {fr(k, i)}, v{VA}, s[8:11], s{24+i} offen offset:{(k % 4)*1024}", ("f", k, i)))
        return out

    def adv():
        return [f"s_add_u32 s{24+i}, s{24+i}, 4096" for i in range(12)]

    order = [8, 0, 1, 2, 3, 4, 5, 6, 7, 9, 10, 11]
    for k in range(DEPTH):
        ld = loads(k)
        for i in order:
            p.vm_op(*ld[i])
        if k % 4 == 3:
            for s in adv():
                e(s)
    marks = []
    for k in range(NK):
        if k == 1:
            stamp()
        if k % 4 == 0:
            marks.append(len(p.L))
        kn = k + DEPTH
        ld = loads(kn) if kn < NK else None
        for m in range(32):
            nt, mt = m >> 3, m & 7
            p.wait_vm([("f", k, 8 + nt), ("f", k, mt)])
            acc = vr(ACC + (nt * 8 + mt) * 4)
            e(mfma(acc, fr(k, 8 + nt), fr(k, mt), "0" if k == 0 else acc))
            if k >= 1 and (k - 1 + DEPTH) < NK and m < 24 and m % 2 == 0:
                l2 = loads(k - 1 + DEPTH)
                p.vm_op(*l2[order[m // 2]])
            if k >= 1 and (k - 1 + DEPTH) < NK and (k - 1 + DEPTH) % 4 == 3 and m >= 24:
                a = adv()
                e(a[m - 24])
                if m == 31:
                    for s in a[8:]:
                        e(s)
    marks.append(len(p.L))
    stamp()
    e("s_nop 7")
    e("s_nop 7")
    e("s_lshl_b32 s20, s16, 13")
    e(f"v_add_u32 v{T}, s20, v{VA}")
    for dw in range(4):
        for nt in range(4):
            for h in range(2):
                a = ACC + (nt * 8 + 2 * dw + h) * 4
                off = dw * 32768 + (nt * 2 + h) * 1024
                if off < 65536:
                    p.lds_op(f"ds_write_b128 v{T}, {vr(a)} offset:{off}")
                else:
                    if dw == 2 and nt == 0 and h == 0:
                        e(f"v_add_u32 v{T+1}, 0x10000, v{T}")
                    p.lds_op(f"ds_write_b128 v{T+1}, {vr(a)} offset:{off-65536}")
    p.wait_lds_all()
    e("s_barrier")
    e("s_lshl_b32 s20, s16, 15")
    e(f"v_add_u32 v{T}, s20, v{VA}")
    for sw in range(4):
        for t in range(8):
            p.lds_op(f"ds_read_b128 {vr((sw*8+t)*4)}, v{T} offset:{sw*8192 + t*1024}", ("r", sw, t))
            if len(p.lds) - p.lds_done >= 15:
                p.wait_lds([p.lds[p.lds_done + 3]])
    p.wait_lds_all()
    for t in range(8):
        for i in range(4):
            e(f"v_add_f32 v{t*4+i}, v{t*4+i}, v{32+t*4+i}")
            e(f"v_add_f32 v{64+t*4+i}, v{64+t*4+i}, v{96+t*4+i}")
        for i in range(4):
            e(f"v_add_f32 v{t*4+i}, v{t*4+i}, v{64+t*4+i}")
    e(f"v_lshlrev_b32 v{T}, 10, v{i16}")
    e(f"v_lshl_add_u32 v{T}, v{g}, 4, v{T}")
    e("s_lshl_b32 s20, s18, 17")
    e("s_lshl_b32 s21, s16, 15")
    e("s_add_u32 s20, s20, s21")
    e("s_lshl_b32 s21, s19, 7")
    e("s_add_u32 s20, s20, s21")
    for h in range(2):
        for N in range(2):
            d = 32 + (h * 2 + N) * 4
            for T2 in range(2):
                t = (2 * N + T2) * 2 + h
                e(f"v_cvt_pk_bf16_f32 v{d+T2*2}, v{t*4}, v{t*4+1}")
                e(f"v_cvt_pk_bf16_f32 v{d+T2*2+1}, v{t*4+2}, v{t*4+3}")
            e(f"s_add_u32 s21, s20, {h*16384}")
            p.vm_op(f"buffer_store_dwordx4 {vr(d)}, v{T}, s[12:15], s21 offen offset:{N*64}")
    stamp()
    if opts.get("dbg"):
        e("s_load_dwordx2 s[64:65], s[0:1], 48")
        e("s_waitcnt lgkmcnt(0)")
        e("s_and_b32 s65, s65, 0xffff")
        e("s_mov_b32 s66, 256")
        e("s_mov_b32 s67, 0x20000")
        e(f"s_cmp_eq_u32 s2, {opts.get('dbg')}")
        e("s_cbranch_scc0 L_k2_done")
        e("s_cmp_eq_u32 s16, 0")
        e("s_cbranch_scc0 L_k2_done")
        e(f"s_mov_b32 s10, {WS_USED + 2*1024*128 + 4096}")
        e(f"v_lshlrev_b32 v{T+1}, 2, v{lane}")
        e(f"s_mov_b32 s20, {WS_USED + opts.get('dbg')*4*128 + 14*4}")
        e(f"buffer_load_dword v{T}, v{T+1}, s[8:11], s20 offen")
        e("s_waitcnt vmcnt(0)")
        e(f"v_cmp_gt_u32 vcc, 12, v{lane}")
        e("s_and_saveexec_b64 s[20:21], vcc")
        e(f"buffer_store_dword v{T}, v{T+1}, s[64:67], 0 offen")
        e("s_mov_b64 exec, s[20:21]")
        e(f"v_mov_b32 v{T+1}, 0")
        for i in range(4):
            e(f"v_mov_b32 v{T}, s{86+i}")
            e(f"buffer_store_dword v{T}, v{T+1}, s[64:67], 0 offen offset:{48+i*4}")
            e("s_nop 1")
    elif opts.get("stamp"):
        e(f"s_mov_b32 s10, {WS_USED + 2*1024*128 + 4096}")
        e("s_lshl_b32 s20, s2, 2")
        e("s_add_u32 s20, s20, s16")
        e("s_lshl_b32 s20, s20, 7")
        e(f"s_add_u32 s20, s20, {WS_USED + 1024*128}")
        e(f"v_mov_b32 v{T+1}, 0")
        for i in range(28):
            e(f"v_mov_b32 v{T}, s{72+i}")
            e(f"buffer_store_dword v{T}, v{T+1}, s[8:11], s20 offen offset:{i*4}")
            e("s_nop 1")
    L = p.L
    if DEPTH != 4:
        return L
    rs = [(marks[i], marks[i + 1]) for i in range(1, 7)]
    out = L[:rs[0][0]] + fold(L, rs, "L_k2", 40) + L[rs[-1][1]:]
    return out


def kernel_desc(name, vgpr, accum, sgpr):
    return [
        f".amdhsa_kernel {name}",
        f"  .amdhsa_next_free_vgpr {vgpr}",
        f"  .amdhsa_next_free_sgpr {sgpr}",
        f"  .amdhsa_accum_offset {accum}",
        "  .amdhsa_group_segment_fixed_size 0",
        "  .amdhsa_kernarg_size 64",
        "  .amdhsa_user_sgpr_count 2",
        "  .amdhsa_user_sgpr_kernarg_segment_ptr 1",
        "  .amdhsa_system_sgpr_workgroup_id_x 1",
        ".end_amdhsa_kernel",
    ]


def main(path, opts):
    out = []
    out.append(f"; @launch kernel=gqa_attn_kernel grid=(256,1,1) block=(256,1,1) lds={LDS_BYTES}")
    if not opts.get("k1only"):
        out.append("; @launch kernel=gqa_oproj_kernel grid=(240,1,1) block=(256,1,1) lds=131072")
    out.append('.amdgcn_target "amdgcn-amd-amdhsa--gfx950"')
    out.append(".text")
    out += [".globl gqa_attn_kernel", ".p2align 8", ".type gqa_attn_kernel,@function", "gqa_attn_kernel:"]
    out += k1_text(opts)
    out += ["L_k1_done:", "s_endpgm"]
    out += [".globl gqa_oproj_kernel", ".p2align 8", ".type gqa_oproj_kernel,@function", "gqa_oproj_kernel:"]
    out += k2_text(opts)
    out += ["L_k2_done:", "s_endpgm", "L_text_end:"]
    out += ['.section .rodata,"a"', ".p2align 6"]
    out += kernel_desc("gqa_attn_kernel", 512, 256, 102)
    out += [".p2align 6"]
    out += kernel_desc("gqa_oproj_kernel", 512, 256, 102)
    open(path, "w").write("\n".join(out) + "\n")


if __name__ == "__main__":
    opts = {}
    for a in sys.argv[2:]:
        k, _, v = a.partition("=")
        opts[k] = int(v) if v else 1
    main(sys.argv[1], opts)
```
